```python
import torch

def _softmax(x, axis=-1):
    return torch.softmax(x, dim=axis)
def _gelu(x):
    return torch.nn.functional.gelu(x, approximate="tanh")
def _silu(x):
    return torch.nn.functional.silu(x)
def _sigmoid(x):
    return torch.sigmoid(x)
def _layernorm(x, axis=-1, eps=1e-5):
    m = x.mean(dim=axis, keepdim=True)
    v = x.var(dim=axis, keepdim=True, unbiased=False)
    return (x - m) / torch.sqrt(v + eps)
def _scatter_add(tgt, idx, src, axis=0):
    return tgt.clone().index_add_(axis, idx, src)
def _segment_sum(src, seg, n):
    out = torch.zeros((n,) + src.shape[1:], dtype=src.dtype)
    return out.index_add_(0, seg, src)
def _pad(x, pw):
    flat = tuple(v for pair in reversed(pw) for v in pair)
    return torch.nn.functional.pad(x, flat)

kernel_name = 'concat_heads__gqa_block_cached__gqa_block_cached__near_ridge'

def setup_inputs():

    _w = (lambda a: (lambda t: t.to(torch.bfloat16) if t.is_floating_point() else t)(torch.as_tensor(a)))
    def _A_setup():
        B, Sq, D = 16, 144, 512
        Hq, Hkv, Sk, Dh = 32, 32, 512, 128
        assert Hq % Hkv == 0, (Hq, Hkv)
        return {
            "x": _w((lambda *s: torch.randn(*s, dtype=torch.bfloat16) * 0.8)(B, Sq, D)),
            "k_cache": _w((lambda *s: torch.randn(*s, dtype=torch.bfloat16) * 0.8)(B, Hkv, Sk, Dh)),
            "v_cache": _w((lambda *s: torch.randn(*s, dtype=torch.bfloat16) * 0.05)(B, Hkv, Sk, Dh)),
            "wq": _w((lambda *s: torch.randn(*s, dtype=torch.bfloat16) * 0.8)(D, Hq * Dh) * (D ** -0.5)),
            "wo": _w((lambda *s: torch.randn(*s, dtype=torch.bfloat16) * 0.05)(Hq * Dh, D) * ((Hq * Dh) ** -0.5)),
        }
    _A_in = _A_setup()

    def _B_setup():
        B, Sq, D = 16, 144, 512
        Hq, Hkv, Sk, Dh = 32, 32, 512, 128
        assert Hq % Hkv == 0, (Hq, Hkv)
        return {
            "x": _w((lambda *s: torch.randn(*s, dtype=torch.bfloat16) * 0.8)(B, Sq, D)),
            "k_cache": _w((lambda *s: torch.randn(*s, dtype=torch.bfloat16) * 0.8)(B, Hkv, Sk, Dh)),
            "v_cache": _w((lambda *s: torch.randn(*s, dtype=torch.bfloat16) * 0.05)(B, Hkv, Sk, Dh)),
            "wq": _w((lambda *s: torch.randn(*s, dtype=torch.bfloat16) * 0.8)(D, Hq * Dh) * (D ** -0.5)),
            "wo": _w((lambda *s: torch.randn(*s, dtype=torch.bfloat16) * 0.05)(Hq * Dh, D) * ((Hq * Dh) ** -0.5)),
        }
    _B_in = _B_setup()

    return {
        "A_x": _A_in["x"],
        "A_k_cache": _A_in["k_cache"],
        "A_v_cache": _A_in["v_cache"],
        "A_wq": _A_in["wq"],
        "A_wo": _A_in["wo"],
        "B_x": _B_in["x"],
        "B_k_cache": _B_in["k_cache"],
        "B_v_cache": _B_in["v_cache"],
        "B_wq": _B_in["wq"],
        "B_wo": _B_in["wo"],
    }

def reference(A_x, A_k_cache, A_v_cache, A_wq, A_wo, B_x, B_k_cache, B_v_cache, B_wq, B_wo):
    def _A_ref(x, k_cache, v_cache, wq, wo):
        B, Sq, D = x.shape
        Hq, Dh = 32, 128
        Hkv = k_cache.shape[1]
        rep = Hq // Hkv
        q = (lambda x, *d: x.permute(*d))((x @ wq).reshape(B, Sq, Hq, Dh), 0, 2, 1, 3)
        k = (lambda x, n, axis: torch.repeat_interleave(x, n, dim=axis))(k_cache, rep, axis=1)
        v = (lambda x, n, axis: torch.repeat_interleave(x, n, dim=axis))(v_cache, rep, axis=1)
        scores = torch.einsum("bhqd,bhkd->bhqk", q, k) * (Dh ** -0.5)
        p = _softmax(scores, axis=-1)
        o = torch.einsum("bhqk,bhkd->bhqd", p, v)
        return (lambda x, *d: x.permute(*d))(o, 0, 2, 1, 3).reshape(B, Sq, Hq * Dh) @ wo

    def _B_ref(x, k_cache, v_cache, wq, wo):
        B, Sq, D = x.shape
        Hq, Dh = 32, 128
        Hkv = k_cache.shape[1]
        rep = Hq // Hkv
        q = (lambda x, *d: x.permute(*d))((x @ wq).reshape(B, Sq, Hq, Dh), 0, 2, 1, 3)
        k = (lambda x, n, axis: torch.repeat_interleave(x, n, dim=axis))(k_cache, rep, axis=1)
        v = (lambda x, n, axis: torch.repeat_interleave(x, n, dim=axis))(v_cache, rep, axis=1)
        scores = torch.einsum("bhqd,bhkd->bhqk", q, k) * (Dh ** -0.5)
        p = _softmax(scores, axis=-1)
        o = torch.einsum("bhqk,bhkd->bhqd", p, v)
        return (lambda x, *d: x.permute(*d))(o, 0, 2, 1, 3).reshape(B, Sq, Hq * Dh) @ wo

    a = _A_ref(A_x, A_k_cache, A_v_cache, A_wq, A_wo)
    b = _B_ref(B_x, B_k_cache, B_v_cache, B_wq, B_wo)
    return torch.concatenate([a, b], axis=-1)
```

```python
import sys, struct

NAME = "concat_heads__gqa_block_cached__gqa_block_cached__near_ridge"
K1 = NAME + "_kernel"
K2 = "oproj_kernel"

O_BYTES = 2 * 16 * 32 * 36864
WOT_OFF = O_BYTES
SCALE = 0.08838834764831845 * 1.4426950408889634
THR = 16.0

def f32bits(x):
    return struct.unpack("<I", struct.pack("<f", x))[0]

class Asm:
    def __init__(self):
        self.lines = []
    def __call__(self, s):
        self.lines.append("    " + s)
    def label(self, l):
        self.lines.append(l + ":")
    def raw(self, s):
        self.lines.append(s)
    def text(self):
        return "\n".join(self.lines) + "\n"

def vr(b, n=4):
    return "v[%d:%d]" % (b, b + n - 1)
def ar(b, n=4):
    return "a[%d:%d]" % (b, b + n - 1)

def spread(slots, instrs, g0, g1):
    n = len(instrs); m = g1 - g0 + 1
    for i, ins in enumerate(instrs):
        g = g0 + (i * m) // n
        slots[g].append(ins)

def weave(A, mfmas, slots):
    for i, m in enumerate(mfmas):
        for s in slots[i]:
            if s.endswith(":"):
                A.label(s[:-1])
            else:
                A(s)
        A(m)
    for s in slots[len(mfmas)]:
        if s.endswith(":"):
            A.label(s[:-1])
        else:
            A(s)

KB = [0, 32]
VF = 64
X0, X1 = 96, 132
VR = 96
QB = [128, 144]
SB = [160, 168]
TB = 176
PB = [184, 188]
VM = 192
VL = 201
V_OFFK0, V_OFFK1, V_OFFV0, V_OFFV1 = 210, 211, 212, 213
V_Q, V_W, V_X, V_T0, V_T1, V_T2, V_L16 = 214, 215, 216, 217, 218, 219, 220
ACCV = 224

def acc(t, e):
    u = t * 8 + e
    if u < 64:
        return ar(4 * u)
    return vr(ACCV + 4 * (u - 64))
def acc_reg(t, e, r):
    u = t * 8 + e
    if u < 64:
        return "a%d" % (4 * u + r)
    return "v%d" % (ACCV + 4 * (u - 64) + r)

S_X, S_WQ, S_K, S_V, S_WO, S_O, S_WOT = 8, 12, 16, 20, 24, 28, 32
S_J = 36
S_PLO, S_PHI, S_CNT, S_KOFF, S_VOFF, S_C, S_THR = 44, 45, 46, 47, 48, 49, 50
S_BLK, S_B, S_H, S_W = 51, 52, 53, 54
S_T = 56

def srd(s):
    return "s[%d:%d]" % (s, s + 3)

def perms(raw, frag, i):
    out = []
    for p in range(4):
        a = raw + 4 * (2 * p) + i
        b = raw + 4 * (2 * p + 1) + i
        out.append("v_perm_b32 v%d, v%d, v%d, s%d" % (frag + 4 * (2 * i) + p, b, a, S_PLO))
        out.append("v_perm_b32 v%d, v%d, v%d, s%d" % (frag + 4 * (2 * i + 1) + p, b, a, S_PHI))
    return out

def k_loads(buf):
    out = []
    for kt in range(2):
        for s in range(4):
            out.append("buffer_load_dwordx4 %s, v%d, %s, s%d offen offset:%d" % (
                vr(buf + 4 * (kt * 4 + s)), V_OFFK0 + kt, srd(S_K), S_KOFF, s * 64))
    return out

def v_loads():
    out = []
    for j in range(8):
        out.append("buffer_load_dwordx4 %s, v%d, %s, s%d offen offset:%d" % (
            vr(VR + 4 * j), V_OFFV0 + (j >> 2), srd(S_V), S_VOFF, (j & 3) * 256))
    return out

ROT = True
NOADV = False
def advk():
    if NOADV: return []
    return ["s_add_u32 s%d, s%d, 8192" % (S_KOFF, S_KOFF), "s_and_b32 s%d, s%d, 0x1ffff" % (S_KOFF, S_KOFF)]
def advv():
    if NOADV: return []
    return ["s_add_u32 s%d, s%d, 8192" % (S_VOFF, S_VOFF), "s_and_b32 s%d, s%d, 0x1ffff" % (S_VOFF, S_VOFF)]

def xlane_reduce(A, reg, tmp, op):
    A("v_mov_b32 v%d, v%d" % (tmp, reg))
    A("s_nop 1")
    A("v_permlane16_swap_b32 v%d, v%d" % (tmp, reg))
    A("s_nop 1")
    A("%s v%d, v%d, v%d" % (op, reg, reg, tmp))
    A("v_mov_b32 v%d, v%d" % (tmp, reg))
    A("s_nop 1")
    A("v_permlane32_swap_b32 v%d, v%d" % (tmp, reg))
    A("s_nop 1")
    A("%s v%d, v%d, v%d" % (op, reg, reg, tmp))

PROF = False
PROF_OFF = 64 << 20
def stamp(A, k):
    if PROF:
        A("s_memtime s[%d:%d]" % (86 + 2 * k, 87 + 2 * k))
        A("s_waitcnt lgkmcnt(0)")
def stamp_flush(A, n, wsreg, widreg):
    if not PROF:
        return
    A("s_lshl_b32 s56, s2, 2")
    A("s_add_u32 s56, s56, s%d" % widreg)
    A("s_lshl_b32 s56, s56, 6")
    A("s_add_u32 s56, s56, %d" % PROF_OFF)
    A("s_add_u32 s60, s%d, s56" % wsreg)
    A("s_addc_u32 s61, s%d, 0" % (wsreg + 1))
    A("s_mov_b32 s62, 64")
    A("s_mov_b32 s63, 0x00020000")
    A("v_mov_b32 v1, 0")
    for k in range(n):
        A("v_mov_b32 v2, s%d" % (86 + 2 * k))
        A("v_mov_b32 v3, s%d" % (87 + 2 * k))
        A("buffer_store_dwordx2 v[2:3], v1, s[60:63], 0 offen offset:%d" % (8 * k))
        A("s_nop 1")

def gen_k1(A):
    rare_sites = []
    A.raw(".globl %s" % K1)
    A.raw(".p2align 8")
    A.raw(".type %s,@function" % K1)
    A.label(K1)
    A("s_cmp_ge_u32 s2, 256")
    A("s_cbranch_scc1 K1_done")
    A("s_load_dwordx4 s[64:67], s[0:1], 0")
    A("s_load_dwordx4 s[68:71], s[0:1], 16")
    A("s_load_dwordx2 s[72:73], s[0:1], 32")
    A("s_load_dwordx2 s[74:75], s[0:1], 40")
    A("s_load_dwordx4 s[76:79], s[0:1], 48")
    A("s_load_dwordx4 s[80:83], s[0:1], 64")
    A("s_load_dwordx2 s[84:85], s[0:1], 96")
    stamp(A, 0)
    A("v_lshrrev_b32 v1, 6, v0")
    A("v_and_b32 v%d, 63, v0" % V_T0)
    A("s_nop 0")
    A("v_readfirstlane_b32 s%d, v1" % S_W)
    A("s_and_b32 s%d, s2, 1" % S_BLK)
    A("s_lshr_b32 s56, s2, 3")
    A("s_and_b32 s57, s56, 3")
    A("s_lshr_b32 s58, s2, 1")
    A("s_and_b32 s58, s58, 1")
    A("s_lshl_b32 s58, s58, 2")
    A("s_add_u32 s57, s57, s58")
    A("s_lshl_b32 s57, s57, 2")
    A("s_add_u32 s%d, s57, s%d" % (S_H, S_W))
    A("s_lshr_b32 s58, s2, 2")
    A("s_and_b32 s58, s58, 1")
    A("s_lshl_b32 s58, s58, 3")
    A("s_lshr_b32 s56, s56, 2")
    A("s_add_u32 s%d, s58, s56" % S_B)
    A("v_and_b32 v%d, 15, v%d" % (V_T1, V_T0))
    A("v_lshrrev_b32 v%d, 4, v%d" % (V_T2, V_T0))
    A("v_lshlrev_b32 v%d, 4, v%d" % (V_L16, V_T0))
    A("v_lshlrev_b32 v1, 8, v%d" % V_T1)
    A("v_lshl_add_u32 v%d, v%d, 4, v1" % (V_OFFK0, V_T2))
    A("v_add_u32 v%d, 0x1000, v%d" % (V_OFFK1, V_OFFK0))
    A("v_and_b32 v1, 3, v%d" % V_T1)
    A("v_lshrrev_b32 v2, 2, v%d" % V_T1)
    A("v_lshl_add_u32 v2, v1, 2, v2")
    A("v_lshlrev_b32 v2, 4, v2")
    A("v_lshl_add_u32 v%d, v%d, 10, v2" % (V_OFFV0, V_T2))
    A("v_add_u32 v%d, 0x1000, v%d" % (V_OFFV1, V_OFFV0))
    A("v_lshl_add_u32 v%d, v%d, 16, v2" % (V_W, V_T2))
    A("v_lshlrev_b32 v1, 10, v%d" % V_T1)
    A("v_lshl_add_u32 v3, v%d, 4, v1" % V_T2)
    A("v_lshlrev_b32 v1, 4, v%d" % V_T1)
    A("v_lshl_add_u32 v4, v%d, 13, v1" % V_T2)
    A("v_lshrrev_b32 v1, 3, v%d" % V_T1)
    A("v_lshlrev_b32 v5, 19, v1")
    A("v_bfe_u32 v1, v%d, 1, 2" % V_T1)
    A("v_lshl_add_u32 v5, v1, 10, v5")
    A("v_lshl_add_u32 v5, v%d, 8, v5" % V_T2)
    A("v_and_b32 v1, 1, v%d" % V_T1)
    A("v_lshl_add_u32 v5, v1, 7, v5")
    A("v_mov_b32 v%d, v%d" % (V_X, V_L16))
    A("s_mul_i32 s56, s%d, 36864" % S_W)
    A("v_add_u32 v%d, s56, v%d" % (V_Q, V_L16))
    for j in range(8):
        A("s_mov_b32 s%d, %d" % (S_J + j, j * 8192))
    A("s_mov_b32 s%d, 0x05040100" % S_PLO)
    A("s_mov_b32 s%d, 0x07060302" % S_PHI)
    A("s_mov_b32 s%d, 0x%08x" % (S_C, f32bits(SCALE)))
    A("s_mov_b32 s%d, 0x%08x" % (S_THR, f32bits(THR)))
    A("s_waitcnt lgkmcnt(0)")
    A("s_cmp_eq_u32 s%d, 0" % S_BLK)
    A("s_cselect_b32 s64, s64, s74")
    A("s_cselect_b32 s65, s65, s75")
    A("s_cselect_b32 s66, s66, s76")
    A("s_cselect_b32 s67, s67, s77")
    A("s_cselect_b32 s68, s68, s78")
    A("s_cselect_b32 s69, s69, s79")
    A("s_cselect_b32 s70, s70, s80")
    A("s_cselect_b32 s71, s71, s81")
    A("s_cselect_b32 s72, s72, s82")
    A("s_cselect_b32 s73, s73, s83")
    A("s_mul_i32 s56, s%d, 147456" % S_B)
    A("s_add_u32 s%d, s64, s56" % S_X)
    A("s_addc_u32 s%d, s65, 0" % (S_X + 1))
    A("s_mov_b32 s%d, 147456" % (S_X + 2))
    A("s_mov_b32 s%d, 0x00020000" % (S_X + 3))
    A("s_lshl_b32 s56, s%d, 8" % S_H)
    A("s_add_u32 s%d, s70, s56" % S_WQ)
    A("s_addc_u32 s%d, s71, 0" % (S_WQ + 1))
    A("s_sub_u32 s%d, 4194304, s56" % (S_WQ + 2))
    A("s_mov_b32 s%d, 0x00020000" % (S_WQ + 3))
    A("s_lshl_b32 s56, s%d, 5" % S_B)
    A("s_add_u32 s56, s56, s%d" % S_H)
    A("s_lshl_b32 s57, s56, 17")
    A("s_add_u32 s%d, s66, s57" % S_K)
    A("s_addc_u32 s%d, s67, 0" % (S_K + 1))
    A("s_mov_b32 s%d, 131072" % (S_K + 2))
    A("s_mov_b32 s%d, 0x00020000" % (S_K + 3))
    A("s_add_u32 s%d, s68, s57" % S_V)
    A("s_addc_u32 s%d, s69, 0" % (S_V + 1))
    A("s_mov_b32 s%d, 131072" % (S_V + 2))
    A("s_mov_b32 s%d, 0x00020000" % (S_V + 3))
    A("s_mov_b32 s%d, s72" % S_WO)
    A("s_mov_b32 s%d, s73" % (S_WO + 1))
    A("s_mov_b32 s%d, 4194304" % (S_WO + 2))
    A("s_mov_b32 s%d, 0x00020000" % (S_WO + 3))
    A("s_lshl_b32 s57, s%d, 9" % S_BLK)
    A("s_add_u32 s57, s57, s56")
    A("s_mul_i32 s57, s57, 36864")
    A("s_add_u32 s%d, s84, s57" % S_O)
    A("s_addc_u32 s%d, s85, 0" % (S_O + 1))
    A("s_mov_b32 s%d, 36864" % (S_O + 2))
    A("s_mov_b32 s%d, 0x00020000" % (S_O + 3))
    A("s_lshl_b32 s57, s%d, 22" % S_BLK)
    A("s_add_u32 s57, s57, %d" % WOT_OFF)
    A("s_add_u32 s%d, s84, s57" % S_WOT)
    A("s_addc_u32 s%d, s85, 0" % (S_WOT + 1))
    A("s_mov_b32 s%d, 4194304" % (S_WOT + 2))
    A("s_mov_b32 s%d, 0x00020000" % (S_WOT + 3))
    if ROT:
        A("s_add_u32 s56, s%d, s%d" % (S_H, S_B))
        A("s_and_b32 s56, s56, 15")
        A("s_lshl_b32 s%d, s56, 13" % S_KOFF)
        A("s_mov_b32 s%d, s%d" % (S_VOFF, S_KOFF))
    else:
        A("s_mov_b32 s%d, 0" % S_KOFF)
        A("s_mov_b32 s%d, 0" % S_VOFF)

    A("s_mul_i32 s56, s%d, 36864" % S_W)
    A("s_lshl_b32 s57, s%d, 8" % S_W)
    for i in range(36):
        sl, t = divmod(i, 9)
        A("s_add_u32 m0, s56, %d" % (i * 1024))
        A("s_add_u32 s58, s57, %d" % (t * 16384 + sl * 64))
        A("buffer_load_dwordx4 v3, %s, s58 offen lds" % srd(S_X))
    def wq_loads(buf):
        return ["buffer_load_dwordx4 %s, v%d, %s, s%d offen" % (vr(buf + 4 * j), V_W, srd(S_WQ), S_J + j) for j in range(8)]
    A("s_and_b32 s56, s%d, 3" % S_B)
    A("s_lshr_b32 s57, s%d, 2" % S_B)
    A("s_lshl_b32 s58, s%d, 2" % S_H)
    A("s_add_u32 s58, s58, s56")
    A("s_lshl_b32 s59, s58, 15")
    A("s_lshl_b32 s60, s57, 8")
    A("s_add_u32 s59, s59, s60")
    A("s_add_u32 s60, s59, 4096")
    for j in range(8):
        A("buffer_load_dwordx4 %s, v4, %s, s%d offen offset:%d" % (vr(96 + 4 * j), srd(S_WO), 59 + (j >> 2), (j & 3) * 1024))
    A("s_lshl_b32 s59, s57, 20")
    A("s_lshl_b32 s60, s58, 12")
    A("s_add_u32 s59, s59, s60")
    A("v_mov_b32 v%d, v5" % V_T0)
    for ins in wq_loads(KB[0]): A(ins)
    A("v_add_u32 v%d, 0x40000, v%d" % (V_W, V_W))
    for ins in wq_loads(KB[1]): A(ins)
    A("v_add_u32 v%d, 0x40000, v%d" % (V_W, V_W))
    for u in range(256):
        A("v_accvgpr_write_b32 a%d, 0" % u)
    for u in range(32):
        A("v_mov_b32 v%d, 0" % (ACCV + u))
    A("s_waitcnt vmcnt(0)")
    for i in range(4):
        for ins in perms(96, 64, i): A(ins)
    for e in range(8):
        A("buffer_store_dwordx4 %s, v%d, %s, s59 offen offset:%d" % (vr(64 + 4 * e), V_T0, srd(S_WOT), e * 16))
    A("s_nop 1")
    for i in range(3):
        for ins in perms(KB[0], VF, i): A(ins)
    A("s_barrier")
    stamp(A, 1)
    XB = [X0, X1]
    def x_reads(buf):
        return ["ds_read_b128 %s, v%d offset:%d" % (vr(buf + 4 * t), V_X, t * 1024) for t in range(9)]
    for ins in x_reads(X0): A(ins)
    A("v_add_u32 v%d, 9216, v%d" % (V_X, V_X))

    def qstep(par, kind):
        mf = []
        for e in range(8):
            for t in range(9):
                mf.append("v_mfma_f32_16x16x32_bf16 %s, %s, %s, %s" % (acc(t, e), vr(VF + 4 * e), vr(XB[par] + 4 * t), acc(t, e)))
        sl = [[] for _ in range(73)]
        sl[0].append("s_waitcnt lgkmcnt(0)")
        spread(sl, perms(KB[par], VF, 3), 1, 8)
        if kind != 'l1':
            spread(sl, x_reads(XB[par ^ 1]) + ["v_add_u32 v%d, 9216, v%d" % (V_X, V_X)], 1, 10)
        else:
            spread(sl, v_loads(), 1, 8)
        if kind == 'mid':
            spread(sl, wq_loads(KB[par]) + ["v_add_u32 v%d, 0x40000, v%d" % (V_W, V_W)], 9, 17)
        elif kind == 'l2':
            spread(sl, k_loads(KB[0]) + advk(), 9, 17)
        else:
            spread(sl, k_loads(KB[1]) + advk(), 9, 17)
        if kind != 'l1':
            sl[18].append("s_waitcnt vmcnt(8)")
            spread(sl, perms(KB[par ^ 1], VF, 0), 19, 26)
            spread(sl, perms(KB[par ^ 1], VF, 1), 37, 44)
            spread(sl, perms(KB[par ^ 1], VF, 2), 55, 62)
        weave(A, mf, sl)

    A("s_mov_b32 s%d, 7" % S_CNT)
    A.label("K1_qloop")
    qstep(0, 'mid')
    qstep(1, 'mid')
    A("s_sub_u32 s%d, s%d, 1" % (S_CNT, S_CNT))
    A("s_cmp_lg_u32 s%d, 0" % S_CNT)
    A("s_cbranch_scc1 K1_qloop")
    qstep(0, 'l2')
    qstep(1, 'l1')
    for ins in advv(): A(ins)
    A("s_nop 7")
    stamp(A, 2)
    A("s_barrier")
    tmp = [128, 140, 152, 164]
    n = 0
    for t in range(9):
        for s in range(4):
            b = tmp[n & 3]; n += 1
            srcs = []
            for e in range(8):
                r = acc_reg(t, e, s)
                if r[0] == 'a':
                    A("v_accvgpr_read_b32 v%d, %s" % (b + e, r))
                    srcs.append("v%d" % (b + e))
                else:
                    srcs.append(r)
            for p in range(4):
                A("v_cvt_pk_bf16_f32 v%d, %s, %s" % (b + 8 + p, srcs[2 * p], srcs[2 * p + 1]))
            A("ds_write_b128 v%d, %s offset:%d" % (V_Q, vr(b + 8), (t * 4 + s) * 1024))
    A("s_waitcnt lgkmcnt(0)")

    def q_reads(buf, t):
        return ["ds_read_b128 %s, v%d offset:%d" % (vr(buf + 4 * s), V_Q, (t * 4 + s) * 1024) for s in range(4)]
    def a_mfmas(kb, qb, sb):
        out = []
        for s in range(4):
            for kt in range(2):
                c = "0" if s == 0 else vr(sb + 4 * kt)
                out.append("v_mfma_f32_16x16x32_bf16 %s, %s, %s, %s" % (vr(sb + 4 * kt), vr(kb + 4 * (kt * 4 + s)), vr(qb + 4 * s), c))
        return out
    def c_mfmas(t, pb, first):
        out = []
        for e in range(8):
            c = "0" if first else acc(t, e)
            out.append("v_mfma_f32_16x16x32_bf16 %s, %s, %s, %s" % (acc(t, e), vr(VF + 4 * e), vr(pb), c))
        return out

    stamp(A, 3)
    for ins in q_reads(QB[0], 0): A(ins)
    for ins in q_reads(QB[1], 1): A(ins)
    A("s_waitcnt vmcnt(16) lgkmcnt(4)")
    for ins in a_mfmas(KB[0], QB[0], SB[0]): A(ins)
    A("s_waitcnt vmcnt(8)")
    for i in range(4):
        for ins in perms(VR, VF, i): A(ins)

    def iteration(bpar, t, kind, site):
        par = (bpar + t) & 1
        mf = []
        sl = [[] for _ in range(17)]
        has_a = not (kind == 'last' and t == 8) and kind != 'drain'
        has_c = not (kind == 'first' and t == 0)
        has_b = kind != 'drain'
        if has_a:
            kb = KB[bpar] if t < 8 else KB[bpar ^ 1]
            amf = a_mfmas(kb, QB[par ^ 1], SB[par ^ 1])
        else:
            amf = []
        if has_c:
            tc = (t - 1) % 9
            firstc = (kind == 'first') or (kind == 'mid_after_first' and t == 0)
            cmf = c_mfmas(tc, PB[par ^ 1], firstc)
        else:
            cmf = []
        mf = amf + cmf
        nm = len(mf)
        sl = [[] for _ in range(nm + 1)]
        na = len(amf)
        w0 = "s_waitcnt lgkmcnt(0)"
        if t == 8 and has_a:
            w0 = "s_waitcnt vmcnt(8) lgkmcnt(0)"
        if has_a:
            sl[0].append(w0)
        S = SB[par]; m = VM + t; l = VL + t; P = PB[par]
        def G(x):
            return min(nm, (x * nm) // 16)
        if has_b:
            fm = ["v_fma_f32 v%d, v%d, s%d, -v%d" % (TB + i, S + i, S_C, m) for i in range(8)]
            mx = ["v_max3_f32 v%d, v%d, v%d, v%d" % (V_T0, TB, TB + 1, TB + 2),
                  "v_max3_f32 v%d, v%d, v%d, v%d" % (V_T0, V_T0, TB + 3, TB + 4),
                  "v_max3_f32 v%d, v%d, v%d, v%d" % (V_T0, V_T0, TB + 5, TB + 6),
                  "v_max_f32 v%d, v%d, v%d" % (V_T0, V_T0, TB + 7)]
            ex = ["v_exp_f32 v%d, v%d" % (TB + i, TB + i) for i in range(8)]
            cv = ["v_cvt_pk_bf16_f32 v%d, v%d, v%d" % (P + p, TB + 2 * p, TB + 2 * p + 1) for p in range(4)]
            ad = ["v_add_f32 v%d, v%d, v%d" % (TB, TB, TB + 1),
                  "v_add_f32 v%d, v%d, v%d" % (TB + 2, TB + 2, TB + 3),
                  "v_add_f32 v%d, v%d, v%d" % (TB + 4, TB + 4, TB + 5),
                  "v_add_f32 v%d, v%d, v%d" % (TB + 6, TB + 6, TB + 7),
                  "v_add_f32 v%d, v%d, v%d" % (TB, TB, TB + 2),
                  "v_add_f32 v%d, v%d, v%d" % (TB + 4, TB + 4, TB + 6)]
            if kind == 'first':
                ad += ["v_add_f32 v%d, v%d, v%d" % (l, TB, TB + 4)]
                pre = ["v_max3_f32 v%d, v%d, v%d, v%d" % (V_T0, S, S + 1, S + 2),
                       "v_max3_f32 v%d, v%d, v%d, v%d" % (V_T0, V_T0, S + 3, S + 4),
                       "v_max3_f32 v%d, v%d, v%d, v%d" % (V_T0, V_T0, S + 5, S + 6),
                       "v_max_f32 v%d, v%d, v%d" % (V_T0, V_T0, S + 7)]
                X = Asm(); xlane_reduce(X, V_T0, V_T1, "v_max_f32")
                pre += [x.strip() for x in X.lines]
                pre += ["v_mul_f32 v%d, s%d, v%d" % (m, S_C, V_T0)]
                spread(sl, pre, G(0), G(4))
                spread(sl, fm, G(5), G(7))
                spread(sl, ex, G(8), G(13))
                spread(sl, cv + ["s_nop 0"] + ad, G(14), G(16))
            else:
                ad += ["v_add_f32 v%d, v%d, v%d" % (TB, TB, TB + 4),
                       "v_add_f32 v%d, v%d, v%d" % (l, l, TB)]
                spread(sl, fm, G(0), G(2))
                spread(sl, mx + ["v_cmp_lt_f32 vcc, s%d, v%d" % (S_THR, V_T0)], G(3), G(4))
                sl[G(6)].append("s_cbranch_vccnz K1_rare_%s" % site)
                sl[G(6)].append("K1_back_%s:" % site)
                rare_sites.append((site, t, S))
                spread(sl, ex, G(6), G(12))
                spread(sl, cv + ad, G(13), G(16))
        need_q = kind in ('first', 'mid', 'mid_after_first') or (kind == 'last' and t <= 6)
        if need_q:
            spread(sl, q_reads(QB[par], (t + 2) % 9), G(1), G(5))
        if t == 8 and kind in ('first', 'mid', 'mid_after_first'):
            spread(sl, k_loads(KB[bpar]) + advk(), G(2), G(10))
        if kind != 'first' and kind != 'drain':
            if t == 0:
                sl[na + 1].append("s_waitcnt vmcnt(%d)" % (0 if kind == 'last' else 8))
                spread(sl, perms(VR, VF, 0), na + 2, na + 4)
                spread(sl, perms(VR, VF, 1), na + 4, na + 6)
                spread(sl, perms(VR, VF, 2), na + 6, na + 8)
            if t == 1:
                spread(sl, perms(VR, VF, 3), 1, 4)
        if t == 2 and kind in ('first', 'mid', 'mid_after_first'):
            spread(sl, v_loads() + advv(), G(2), G(10))
        weave(A, mf, sl)

    for t in range(9):
        iteration(0, t, 'first', None)
    stamp(A, 4)
    A("s_mov_b32 s%d, 7" % S_CNT)
    for u in range(32):
        A("v_mov_b32 v%d, 0" % (ACCV + u))
    A.label("K1_aloop")
    for t in range(9):
        iteration(1, t, 'mid', "o%d" % t)
    for t in range(9):
        iteration(0, t, 'mid', "e%d" % t)
    A("s_sub_u32 s%d, s%d, 1" % (S_CNT, S_CNT))
    A("s_cmp_lg_u32 s%d, 0" % S_CNT)
    A("s_cbranch_scc1 K1_aloop")
    for t in range(9):
        iteration(1, t, 'last', "l%d" % t)
    iteration(0, 0, 'drain', None)
    A("s_nop 7")
    stamp(A, 5)
    for t in range(9):
        xlane_reduce(A, VL + t, V_T0, "v_add_f32")
        A("v_rcp_f32 v%d, v%d" % (VL + t, VL + t))
    n = 0
    tmp = [0, 12, 24, 36, 48, 60]
    for t in range(9):
        for s in range(4):
            b = tmp[n % 6]; n += 1
            for e in range(8):
                r = acc_reg(t, e, s)
                if r[0] == 'a':
                    A("v_accvgpr_read_b32 v%d, %s" % (b + e, r))
            for e in range(8):
                r = acc_reg(t, e, s)
                src = "v%d" % (b + e) if r[0] == 'a' else r
                A("v_mul_f32 v%d, v%d, %s" % (b + e, VL + t, src))
            for p in range(4):
                A("v_cvt_pk_bf16_f32 v%d, v%d, v%d" % (b + 8 + p, b + 2 * p, b + 2 * p + 1))
            A("s_mov_b32 s56, %d" % ((s * 9 + t) * 1024))
            A("buffer_store_dwordx4 %s, v%d, %s, s56 offen" % (vr(b + 8), V_L16, srd(S_O)))
    if PROF:
        A("s_waitcnt vmcnt(0)")
    stamp(A, 6)
    stamp_flush(A, 7, 84, S_W)
    A.label("K1_done")
    A("s_endpgm")
    for site, t, S in rare_sites:
        m = VM + t; l = VL + t
        A.label("K1_rare_%s" % site)
        A("v_max3_f32 v%d, v%d, v%d, v%d" % (V_T0, S, S + 1, S + 2))
        A("v_max3_f32 v%d, v%d, v%d, v%d" % (V_T0, V_T0, S + 3, S + 4))
        A("v_max3_f32 v%d, v%d, v%d, v%d" % (V_T0, V_T0, S + 5, S + 6))
        A("v_max_f32 v%d, v%d, v%d" % (V_T0, V_T0, S + 7))
        xlane_reduce(A, V_T0, V_T1, "v_max_f32")
        A("v_mul_f32 v%d, s%d, v%d" % (V_T0, S_C, V_T0))
        A("v_max_f32 v%d, v%d, v%d" % (V_T0, V_T0, m))
        A("v_sub_f32 v%d, v%d, v%d" % (V_T1, m, V_T0))
        A("v_exp_f32 v%d, v%d" % (V_T1, V_T1))
        A("v_mov_b32 v%d, v%d" % (m, V_T0))
        A("v_mul_f32 v%d, v%d, v%d" % (l, l, V_T1))
        for e in range(8):
            for r in range(4):
                reg = acc_reg(t, e, r)
                if reg[0] == 'a':
                    A("v_accvgpr_read_b32 v%d, %s" % (TB + r, reg))
            for r in range(4):
                reg = acc_reg(t, e, r)
                if reg[0] == 'a':
                    A("v_mul_f32 v%d, v%d, v%d" % (TB + r, TB + r, V_T1))
                else:
                    A("v_mul_f32 %s, %s, v%d" % (reg, reg, V_T1))
            for r in range(4):
                reg = acc_reg(t, e, r)
                if reg[0] == 'a':
                    A("v_accvgpr_write_b32 %s, v%d" % (reg, TB + r))
        for i in range(8):
            A("v_fma_f32 v%d, v%d, s%d, -v%d" % (TB + i, S + i, S_C, m))
        A("s_branch K1_back_%s" % site)

def gen_k2(A):
    NB = 4
    BUF = [0, 52, 104, 156]
    V_A0, V_A1, V_A2, V_LN, V_U0, V_U1 = 208, 209, 210, 211, 212, 213
    def acc2(t, i): return ar(4 * (t * 4 + i))
    A.raw(".globl %s" % K2)
    A.raw(".p2align 8")
    A.raw(".type %s,@function" % K2)
    A.label(K2)
    A("s_cmp_ge_u32 s2, 256")
    A("s_cbranch_scc1 K2_done")
    A("s_load_dwordx2 s[64:65], s[0:1], 80")
    A("s_load_dwordx2 s[66:67], s[0:1], 96")
    A("v_lshrrev_b32 v1, 6, v0")
    A("v_and_b32 v%d, 63, v0" % V_LN)
    A("s_nop 0")
    A("v_readfirstlane_b32 s54, v1")
    A("s_and_b32 s51, s2, 1")
    A("s_lshr_b32 s56, s2, 1")
    A("s_and_b32 s56, s56, 3")
    A("s_lshr_b32 s57, s2, 3")
    A("s_and_b32 s53, s57, 7")
    A("s_lshr_b32 s57, s57, 3")
    A("s_lshl_b32 s56, s56, 2")
    A("s_add_u32 s52, s56, s57")
    A("v_lshlrev_b32 v%d, 4, v%d" % (V_A0, V_LN))
    A("v_add_u32 v%d, 0x1000, v%d" % (V_A1, V_A0))
    A("v_add_u32 v%d, 0x2000, v%d" % (V_A2, V_A0))
    A("s_waitcnt lgkmcnt(0)")
    A("s_lshl_b32 s56, s51, 4")
    A("s_add_u32 s56, s56, s52")
    A("s_mul_i32 s56, s56, 1179648")
    A("s_mul_i32 s57, s54, 294912")
    A("s_add_u32 s56, s56, s57")
    A("s_add_u32 s8, s66, s56")
    A("s_addc_u32 s9, s67, 0")
    A("s_mov_b32 s10, %d" % (294912 + 3 * 9216))
    A("s_mov_b32 s11, 0x00020000")
    A("s_lshl_b32 s56, s51, 22")
    A("s_lshl_b32 s57, s53, 19")
    A("s_add_u32 s56, s56, s57")
    A("s_lshl_b32 s57, s54, 17")
    A("s_add_u32 s56, s56, s57")
    A("s_add_u32 s56, s56, %d" % WOT_OFF)
    A("s_add_u32 s12, s66, s56")
    A("s_addc_u32 s13, s67, 0")
    A("s_mov_b32 s14, %d" % (131072 + 3 * 4096))
    A("s_mov_b32 s15, 0x00020000")
    A("s_mul_i32 s56, s52, 294912")
    A("s_add_u32 s16, s64, s56")
    A("s_addc_u32 s17, s65, 0")
    A("s_mov_b32 s18, 294912")
    A("s_mov_b32 s19, 0x00020000")
    A("s_mov_b32 s20, 0")
    A("s_mov_b32 s21, 0")
    def loads(buf):
        out = []
        for i in range(4):
            out.append("buffer_load_dwordx4 %s, v%d, s[12:15], s21 offen offset:%d" % (vr(buf + 36 + 4 * i), V_A0, i * 1024))
        for t in range(9):
            out.append("buffer_load_dwordx4 %s, v%d, s[8:11], s20 offen offset:%d" % (vr(buf + 4 * t), V_A0 + (t >> 2), (t & 3) * 1024))
        out.append("s_add_u32 s20, s20, 9216")
        out.append("s_add_u32 s21, s21, 4096")
        return out
    for k in range(3):
        for ins in loads(BUF[k]): A(ins)
    for u in range(144):
        A("v_accvgpr_write_b32 a%d, 0" % u)
    A("s_mov_b32 s46, 8")
    A.label("K2_loop")
    for k in range(NB):
        b = BUF[k]
        mf = []
        for t in range(9):
            for i in range(4):
                mf.append("v_mfma_f32_16x16x32_bf16 %s, %s, %s, %s" % (acc2(t, i), vr(b + 36 + 4 * i), vr(b + 4 * t), acc2(t, i)))
        sl = [[] for _ in range(37)]
        sl[0].append("s_waitcnt vmcnt(26)")
        spread(sl, loads(BUF[(k + 3) & 3]), 1, 28)
        weave(A, mf, sl)
    A("s_sub_u32 s46, s46, 1")
    A("s_cmp_lg_u32 s46, 0")
    A("s_cbranch_scc1 K2_loop")
    A("s_waitcnt vmcnt(0)")
    A("v_and_b32 v1, 15, v%d" % V_LN)
    A("v_lshrrev_b32 v2, 4, v%d" % V_LN)
    A("v_mul_u32_u24 v1, 272, v1")
    A("v_lshl_add_u32 v1, v2, 4, v1")
    A("s_mul_i32 s56, s54, 39168")
    A("v_add_u32 v1, s56, v1")
    A("s_nop 7")
    for t in range(9):
        for i in range(4):
            A("ds_write_b128 v1, %s offset:%d" % (acc2(t, i), t * 16 * 272 + i * 64))
    A("v_lshrrev_b32 v2, 3, v%d" % V_LN)
    A("v_and_b32 v3, 7, v%d" % V_LN)
    A("s_lshl_b32 s56, s54, 3")
    A("v_add_u32 v2, s56, v2")
    A("v_mul_u32_u24 v4, 272, v2")
    A("v_lshl_add_u32 v4, v3, 5, v4")
    A("v_add_u32 v5, %d, v4" % (1 * 39168))
    A("v_add_u32 v7, %d, v4" % (2 * 39168))
    A("v_add_u32 v8, %d, v4" % (3 * 39168))
    A("v_lshlrev_b32 v6, 11, v2")
    A("v_lshl_add_u32 v6, v3, 4, v6")
    A("s_lshl_b32 s56, s51, 10")
    A("s_lshl_b32 s57, s53, 7")
    A("s_add_u32 s56, s56, s57")
    A("v_add_u32 v6, s56, v6")
    A("s_waitcnt lgkmcnt(0)")
    A("s_barrier")
    for k in range(5):
        b = 16 + 40 * (k & 1)
        ro = k * 32 * 272
        for c in range(4):
            base = ["v4", "v5", "v7", "v8"][c]
            off = ro
            A("ds_read_b128 %s, %s offset:%d" % (vr(b + 8 * c), base, off))
            A("ds_read_b128 %s, %s offset:%d" % (vr(b + 8 * c + 4), base, off + 16))
        A("s_waitcnt lgkmcnt(0)")
        for e in range(8):
            A("v_add_f32 v%d, v%d, v%d" % (b + e, b + e, b + 8 + e))
            A("v_add_f32 v%d, v%d, v%d" % (b + 16 + e, b + 16 + e, b + 24 + e))
        for e in range(8):
            A("v_add_f32 v%d, v%d, v%d" % (b + e, b + e, b + 16 + e))
        for p in range(4):
            A("v_cvt_pk_bf16_f32 v%d, v%d, v%d" % (b + 32 + p, b + 2 * p, b + 2 * p + 1))
        A("s_mov_b32 s56, %d" % (k * 32 * 2048))
        A("buffer_store_dwordx4 %s, v6, s[16:19], s56 offen" % vr(b + 32))
    A.label("K2_done")
    A("s_endpgm")

def descriptor(A, name, vgpr, accum):
    A.raw(".amdhsa_kernel %s" % name)
    A.raw("  .amdhsa_next_free_vgpr %d" % vgpr)
    A.raw("  .amdhsa_next_free_sgpr 102")
    A.raw("  .amdhsa_accum_offset %d" % accum)
    A.raw("  .amdhsa_group_segment_fixed_size 0")
    A.raw("  .amdhsa_kernarg_size 104")
    A.raw("  .amdhsa_user_sgpr_count 2")
    A.raw("  .amdhsa_user_sgpr_kernarg_segment_ptr 1")
    A.raw("  .amdhsa_system_sgpr_workgroup_id_x 1")
    A.raw(".end_amdhsa_kernel")

def main(path):
    A = Asm()
    hdr = open("cdna_kernels/%s.s.ref" % NAME).read().splitlines()
    for ln in hdr:
        if ln.startswith("; @launch"):
            break
        if ln.startswith("; Override") or ln.startswith("; grid=ceil"):
            continue
        A.raw(ln)
    A.raw("; @launch kernel=%s grid=(256,1,1) block=(256,1,1) lds=147456" % K1)
    A.raw("; @launch kernel=%s grid=(256,1,1) block=(256,1,1) lds=156672" % K2)
    A.raw('.amdgcn_target "amdgcn-amd-amdhsa--gfx950"')
    A.raw(".text")
    gen_k1(A)
    gen_k2(A)
    A.raw('.section .rodata,"a"')
    A.raw(".p2align 6")
    descriptor(A, K1, 512, 256)
    A.raw(".p2align 6")
    descriptor(A, K2, 360, 216)
    open(path, "w").write(A.text())

if __name__ == "__main__":
    if "--norot" in sys.argv:
        ROT = False
        sys.argv.remove("--norot")
    if "--noadv" in sys.argv:
        NOADV = True
        sys.argv.remove("--noadv")
    if "--prof" in sys.argv:
        PROF = True
        sys.argv.remove("--prof")
    main(sys.argv[1] if len(sys.argv) > 1 else "cdna_kernels/%s.s" % NAME)
```

```python
import sys, struct

NAME = "concat_heads__gqa_block_cached__gqa_block_cached__near_ridge"
K1 = NAME + "_kernel"
K2 = "reduce_kernel"

SCALE = 0.08838834764831845 * 1.4426950408889634
THR = 16.0
PART_BYTES = 147456
SEL_OFF = 147456
LDS_BYTES = SEL_OFF + 9 * 1024

OPT = dict(prof=False, noadv=False, pffirst=0, xpf=0, xall=1, fine=None, cpf=2, wpf=0, npf=0, pfs0=4, pfs1=12, nt=0)

def f32bits(x):
    return struct.unpack("<I", struct.pack("<f", x))[0]

class Asm:
    def __init__(self):
        self.lines = []
        self.vm = []
        self.waits = []
    def __call__(self, s):
        if s.endswith(":"):
            self.lines.append(s); return
        if s.startswith("WAITVM"):
            parts = s.split()
            tags = parts[1].split(",")
            for tg in tags:
                assert tg in self.vm, tg
            idx = max(i for i, t in enumerate(self.vm) if t in tags)
            n = min(len(self.vm) - 1 - idx, 63)
            self.waits.append(n)
            s = "s_waitcnt vmcnt(%d)" % n
            if len(parts) > 2:
                s += " lgkmcnt(%s)" % parts[2]
            self.lines.append("    " + s); return
        if "|" in s:
            tag, s = s.split("|", 1)
            self.vm.append(tag)
        elif s.startswith("buffer_") or s.startswith("global_"):
            self.vm.append("-")
        self.lines.append("    " + s)
    def many(self, l):
        for s in l: self(s)
    def label(self, l):
        self.lines.append(l + ":")
    def raw(self, s):
        self.lines.append(s)
    def text(self):
        return "\n".join(self.lines) + "\n"

def vr(b, n=4):
    return "v[%d:%d]" % (b, b + n - 1)
def ar(b, n=4):
    return "a[%d:%d]" % (b, b + n - 1)

def spread(slots, instrs, g0, g1):
    n = len(instrs); m = g1 - g0 + 1
    for i, ins in enumerate(instrs):
        slots[g0 + (i * m) // n].append(ins)

def weave(A, mfmas, slots):
    for i, m in enumerate(mfmas):
        for s in slots[i]: A(s)
        A(m)
    for s in slots[len(mfmas)]: A(s)

MFMA = "v_mfma_f32_16x16x32_bf16"

KB = [32, 0]
VF = 64
VR = 96
QB = 128
SB = [144, 152]
PB = [160, 164]
NM = 168
LS, SEL = 204, 208
V_OFFK0, V_OFFK1, V_OFFV0, V_OFFV1, V_Q, V_T0, V_T1, V_L16, V_W, V_X, V_XD, V_PF = range(212, 224)
V_PFD = V_T1
ACCV = 224
RB1, XB1 = [0, 32, 168], [96, 132]
RB2, XB2 = [32, 96, 0], [128, 164]

def acc(t, e):
    u = t * 8 + e
    return ar(4 * u) if u < 64 else vr(ACCV + 4 * (u - 64))
def acc_reg(t, e, r):
    u = t * 8 + e
    return "a%d" % (4 * u + r) if u < 64 else "v%d" % (ACCV + 4 * (u - 64) + r)

S_X, S_WQ, S_K, S_V, S_WO, S_P = 8, 12, 16, 20, 24, 28
S_J = 36
S_PLO, S_PHI, S_CNT, S_KOFF, S_VOFF, S_THR = 44, 45, 46, 47, 48, 50
S_BLK, S_B, S_H, S_W, S_PFO = 51, 52, 53, 54, 55
S_XL, S_XG, S_C = 4, 5, 6
S_HG = 32
S_WOFF = 33

def srd(s):
    return "s[%d:%d]" % (s, s + 3)

def perms(raw, frag, i):
    out = []
    for p in range(4):
        a = raw + 4 * (2 * p) + i
        b = raw + 4 * (2 * p + 1) + i
        out.append("v_perm_b32 v%d, v%d, v%d, s%d" % (frag + 4 * (2 * i) + p, b, a, S_PLO))
        out.append("v_perm_b32 v%d, v%d, v%d, s%d" % (frag + 4 * (2 * i + 1) + p, b, a, S_PHI))
    return out

def adv(s, step=8192):
    if OPT['noadv']: return []
    return ["s_add_u32 s%d, s%d, %d" % (s, s, step), "s_and_b32 s%d, s%d, 0x1ffff" % (s, s)]

def kvflags():
    return " nt" if OPT['nt'] else ""

def k_loads(buf, tag="K"):
    out = []
    for kt in range(2):
        for s in range(4):
            out.append("%s|buffer_load_dwordx4 %s, v%d, %s, s%d offen offset:%d%s" % (
                tag, vr(buf + 4 * (kt * 4 + s)), V_OFFK0 + kt, srd(S_K), S_KOFF, 128 * (s >> 1) + 16 * (s & 1), kvflags()))
    return out + adv(S_KOFF)

def v_loads(tag="V"):
    out = []
    for j in range(8):
        out.append("%s|buffer_load_dwordx4 %s, v%d, %s, s%d offen offset:%d%s" % (
            tag, vr(VR + 4 * j), V_OFFV0 + (j >> 2), srd(S_V), S_VOFF, (j & 3) * 256, kvflags()))
    return out + adv(S_VOFF)

def pf_instr(i):
    j = (i >> 1) + 3
    blk = j >> 1
    out = ["s_mov_b32 s%d, %d" % (S_PFO, blk * 8192 + (i & 1) * 4096)]
    for q in range(4):
        out.append("PF|buffer_load_dwordx4 %s, v%d, %s, s%d offen offset:%d" % (vr(SEL), V_L16, srd(S_V if j & 1 else S_K), S_PFO, q * 1024))
    return out

def xlane_reduce(reg, tmp, op):
    return ["v_mov_b32 v%d, v%d" % (tmp, reg), "s_nop 1",
            "v_permlane16_swap_b32 v%d, v%d" % (tmp, reg), "s_nop 1",
            "%s v%d, v%d, v%d" % (op, reg, reg, tmp),
            "v_mov_b32 v%d, v%d" % (tmp, reg), "s_nop 1",
            "v_permlane32_swap_b32 v%d, v%d" % (tmp, reg), "s_nop 1",
            "%s v%d, v%d, v%d" % (op, reg, reg, tmp)]

def max8(dst, S):
    return ["v_max3_f32 v%d, v%d, v%d, v%d" % (dst, S, S + 1, S + 2),
            "v_max3_f32 v%d, v%d, v%d, v%d" % (dst, dst, S + 3, S + 4),
            "v_max3_f32 v%d, v%d, v%d, v%d" % (dst, dst, S + 5, S + 6),
            "v_max_f32 v%d, v%d, v%d" % (dst, dst, S + 7)]

PROF_OFF = 64 << 20
def stamp(A, k):
    if OPT['prof']:
        A("s_memtime s[%d:%d]" % (86 + 2 * k, 87 + 2 * k))
        A("s_waitcnt lgkmcnt(0)")
def stamp_flush(A, n, wsreg, widreg):
    if not OPT['prof']:
        return
    A("s_lshl_b32 s56, s2, 2")
    A("s_add_u32 s56, s56, s%d" % widreg)
    A("s_lshl_b32 s56, s56, 6")
    A("s_add_u32 s56, s56, %d" % PROF_OFF)
    A("s_add_u32 s60, s%d, s56" % wsreg)
    A("s_addc_u32 s61, s%d, 0" % (wsreg + 1))
    A("s_mov_b32 s62, 64")
    A("s_mov_b32 s63, 0x00020000")
    A("v_mov_b32 v1, 0")
    for k in range(n):
        A("v_mov_b32 v2, s%d" % (86 + 2 * k))
        A("v_mov_b32 v3, s%d" % (87 + 2 * k))
        A("buffer_store_dwordx2 v[2:3], v1, s[60:63], 0 offen offset:%d" % (8 * k))
        A("s_nop 1")

def fstamp(A, k):
    if OPT['fine'] == "S":
        A("s_memtime s[62:63]"); A("s_waitcnt lgkmcnt(0)"); A("v_writelane_b32 v211, s62, %d" % k)

def fine_flush(A):
    A("s_lshl_b32 s56, s2, 2")
    A("s_add_u32 s56, s56, s%d" % S_W)
    A("s_lshl_b32 s56, s56, 8")
    A("s_add_u32 s56, s56, %d" % (PROF_OFF + (1 << 20)))
    A("s_add_u32 s60, s84, s56")
    A("s_addc_u32 s61, s85, 0")
    A("s_mov_b32 s62, 256")
    A("s_mov_b32 s63, 0x00020000")
    A("v_lshrrev_b32 v210, 2, v%d" % V_L16)
    A("buffer_store_dword v211, v210, s[60:63], 0 offen")

def make_srd(A, s, lo, hi, off, size):
    if off is None:
        A("s_mov_b32 s%d, s%d" % (s, lo)); A("s_mov_b32 s%d, s%d" % (s + 1, hi))
    else:
        A("s_add_u32 s%d, s%d, %s" % (s, lo, off)); A("s_addc_u32 s%d, s%d, 0" % (s + 1, hi))
    A("s_mov_b32 s%d, %s" % (s + 2, size))
    A("s_mov_b32 s%d, 0x00020000" % (s + 3))

def x_reads(buf, ks, paired):
    if not paired:
        return ["ds_read_b128 %s, v%d offset:%d" % (vr(buf + 4 * t), V_X, t * 1024) for t in range(9)] + \
               ["v_add_u32 v%d, 9216, v%d" % (V_X, V_X)]
    out = ["ds_read_b128 %s, v%d offset:%d" % (vr(buf + 4 * t), V_X, t * 2048 + (ks & 1) * 512) for t in range(9)]
    if ks & 1:
        out.append("v_add_u32 v%d, 18432, v%d" % (V_X, V_X))
    return out

def proj_loop(A, RB, XB, wloads, wtag, hook, tsets, finish):
    for s in range(16):
        par = s & 1
        mf = []
        if s < 15:
            for e in range(8):
                for t in range(9):
                    c = "0" if s == 0 else acc(t, e)
                    mf.append("%s %s, %s, %s, %s" % (MFMA, acc(t, e), vr(VF + 4 * e), vr(XB[par] + 4 * t), c))
        else:
            for t in range(9):
                for e in range(8):
                    mf.append("%s %s, %s, %s, %s" % (MFMA, acc(t, e), vr(VF + 4 * e), vr(XB[par] + 4 * t), acc(t, e)))
        sl = [[] for _ in range(73)]
        sl[0].append("s_waitcnt lgkmcnt(0)")
        if OPT['fine'] and wtag == OPT['fine']:
            sl[0] += ["s_memtime s[62:63]", "s_waitcnt lgkmcnt(0)", "v_writelane_b32 v211, s62, %d" % (2 * s)]
        if s < 15:
            spread(sl, perms(RB[s % 3], VF, 3), 1, 8)
        else:
            spread(sl, perms(RB[s % 3], VF, 3), 0, 3)
        hook(s, sl, 'pre')
        if OPT['fine'] and wtag == OPT['fine']:
            sl[1] = ["s_memtime s[62:63]", "s_waitcnt lgkmcnt(0)", "v_writelane_b32 v211, s62, %d" % (2 * s + 1)] + sl[1]
        if s < 15:
            spread(sl, x_reads(XB[par ^ 1], s + 1, wtag == "W"), 1, 10)
        if s + 3 < 16:
            spread(sl, wloads(s + 3), 9, 17)
        if s < 15:
            sl[18].append("WAITVM %s%d" % (wtag, s + 1))
            spread(sl, perms(RB[(s + 1) % 3], VF, 0), 19, 26)
            spread(sl, perms(RB[(s + 1) % 3], VF, 1), 37, 44)
            spread(sl, perms(RB[(s + 1) % 3], VF, 2), 55, 62)
        else:
            for t in range(8):
                spread(sl, finish(t), 8 * (t + 1) + 2, min(72, 8 * (t + 2) + 1))
            sl[72] += finish(8)
        hook(s, sl, 'post')
        weave(A, mf, sl)

def gen_k1(A):
    rare_sites = []
    A.raw(".globl %s" % K1)
    A.raw(".p2align 8")
    A.raw(".type %s,@function" % K1)
    A.label(K1)
    A("s_cmp_ge_u32 s2, 256")
    A("s_cbranch_scc1 K1_done")
    A("s_load_dwordx4 s[64:67], s[0:1], 0")
    A("s_load_dwordx4 s[68:71], s[0:1], 16")
    A("s_load_dwordx2 s[72:73], s[0:1], 32")
    A("s_load_dwordx2 s[74:75], s[0:1], 40")
    A("s_load_dwordx4 s[76:79], s[0:1], 48")
    A("s_load_dwordx4 s[80:83], s[0:1], 64")
    A("s_load_dwordx2 s[84:85], s[0:1], 96")
    stamp(A, 0)
    fstamp(A, 0)
    N_, G_ = 1, 2
    A("v_lshrrev_b32 v3, 6, v0")
    A("v_and_b32 v%d, 63, v0" % V_T0)
    A("s_nop 0")
    A("v_readfirstlane_b32 s%d, v3" % S_W)
    A("s_and_b32 s%d, s2, 1" % S_BLK)
    A("s_lshr_b32 s56, s2, 3")
    A("s_and_b32 s57, s56, 3")
    A("s_lshr_b32 s58, s2, 1")
    A("s_and_b32 s58, s58, 1")
    A("s_lshl_b32 s58, s58, 2")
    A("s_add_u32 s%d, s57, s58" % S_HG)
    A("s_lshl_b32 s57, s%d, 2" % S_HG)
    A("s_add_u32 s%d, s57, s%d" % (S_H, S_W))
    A("s_lshr_b32 s58, s2, 2")
    A("s_and_b32 s58, s58, 1")
    A("s_lshl_b32 s58, s58, 3")
    A("s_lshr_b32 s56, s56, 2")
    A("s_add_u32 s%d, s58, s56" % S_B)
    A("v_and_b32 v1, 15, v%d" % V_T0)
    A("v_lshrrev_b32 v2, 4, v%d" % V_T0)
    A("v_lshlrev_b32 v%d, 4, v%d" % (V_L16, V_T0))
    A("v_lshlrev_b32 v%d, 7, v%d" % (V_PF, V_T0))
    if OPT['cpf']:
        A("s_getpc_b64 s[60:61]")
        A("s_lshl_b32 s56, s%d, 13" % S_W)
        A("v_add_u32 v%d, s56, v%d" % (SEL, V_PF))
        for k in range(OPT['cpf']):
            A("global_load_dword v%d, v%d, s[60:61]" % (SEL + 1, SEL))
            A("v_add_u32 v%d, 0x8000, v%d" % (SEL, SEL))
    A("v_lshlrev_b32 v3, 8, v1")
    A("v_lshl_add_u32 v%d, v2, 5, v3" % V_OFFK0)
    A("v_add_u32 v%d, 0x1000, v%d" % (V_OFFK1, V_OFFK0))
    A("v_and_b32 v3, 3, v1")
    A("v_lshrrev_b32 v4, 2, v1")
    A("v_lshl_add_u32 v4, v3, 2, v4")
    A("v_lshlrev_b32 v4, 4, v4")
    A("v_lshl_add_u32 v%d, v2, 10, v4" % V_OFFV0)
    A("v_add_u32 v%d, 0x1000, v%d" % (V_OFFV1, V_OFFV0))
    A("v_bfe_u32 v3, v1, 1, 1")
    A("v_lshlrev_b32 v3, 3, v3")
    A("v_lshrrev_b32 v7, 2, v1")
    A("v_lshl_add_u32 v3, v7, 1, v3")
    A("v_and_b32 v7, 1, v1")
    A("v_add_u32 v3, v3, v7")
    A("v_lshlrev_b32 v3, 4, v3")
    A("v_lshl_add_u32 v%d, v2, 16, v3" % V_W)
    A("v_bfe_u32 v3, v%d, 2, 3" % V_T0)
    A("v_lshlrev_b32 v3, 10, v3")
    A("v_lshrrev_b32 v7, 5, v%d" % V_T0)
    A("v_lshl_add_u32 v3, v7, 6, v3")
    A("v_lshrrev_b32 v7, 3, v%d" % V_T0)
    A("v_xor_b32 v7, v7, v%d" % V_T0)
    A("v_and_b32 v7, 2, v7")
    A("v_lshl_add_u32 v3, v7, 4, v3")
    A("v_and_b32 v7, 1, v%d" % V_T0)
    A("v_lshl_add_u32 v%d, v7, 4, v3" % V_XD)
    A("v_lshrrev_b32 v3, 3, v1")
    A("v_lshlrev_b32 v3, 10, v3")
    A("v_and_b32 v7, 7, v1")
    A("v_lshl_add_u32 v3, v7, 6, v3")
    A("v_lshrrev_b32 v7, 1, v1")
    A("v_xor_b32 v7, v7, v2")
    A("v_and_b32 v7, 2, v7")
    A("v_lshl_add_u32 v3, v7, 4, v3")
    A("v_and_b32 v7, 1, v2")
    A("v_lshl_add_u32 v%d, v7, 4, v3" % V_X)
    A("s_mul_i32 s56, s%d, 36864" % S_W)
    A("v_add_u32 v%d, s56, v%d" % (V_Q, V_L16))
    A("s_lshr_b32 s56, s%d, 1" % S_W)
    A("s_and_b32 s57, s%d, 1" % S_W)
    A("s_mul_i32 s%d, s56, 18432" % S_XL)
    A("s_mul_i32 s58, s57, 9216")
    A("s_add_u32 s%d, s%d, s58" % (S_XL, S_XL))
    A("s_lshl_b32 s%d, s56, 7" % S_XG)
    A("s_mul_i32 s58, s57, 73728")
    A("s_add_u32 s%d, s%d, s58" % (S_XG, S_XG))
    for j in range(8):
        A("s_mov_b32 s%d, %d" % (S_J + j, j * 8192))
    A("s_mov_b32 s%d, 0x05040100" % S_PLO)
    A("s_mov_b32 s%d, 0x07060302" % S_PHI)
    A("s_mov_b32 s%d, 0x%08x" % (S_C, f32bits(SCALE)))
    A("s_mov_b32 s%d, 0x%08x" % (S_C + 1, f32bits(SCALE)))
    A("s_mov_b32 s%d, 0x%08x" % (S_THR, f32bits(THR)))
    A("s_mov_b32 s%d, 0" % S_KOFF)
    A("s_mov_b32 s%d, 0" % S_VOFF)
    A("s_mov_b32 s%d, 0" % S_WOFF)
    A("v_mov_b32 v5, 0x3f803f80")
    A("s_lshl_b32 s56, s%d, 10" % S_W)
    A("s_add_u32 s56, s56, %d" % SEL_OFF)
    A("v_add_u32 v6, s56, v%d" % V_L16)
    for k in range(3):
        A("s_add_u32 s57, s%d, %d" % (S_W, 4 * k))
        A("v_cmp_eq_u32 vcc, s57, v1")
        A("s_nop 1")
        for r in range(4):
            A("v_cndmask_b32 v%d, 0, v5, vcc" % (8 + 4 * k + r))
        if k == 2:
            A("s_cmp_lg_u32 s%d, 0" % S_W)
            A("s_cbranch_scc1 K1_selskip")
        A("ds_write_b128 v6, %s offset:%d" % (vr(8 + 4 * k), 4096 * k))
    A.label("K1_selskip")
    A("s_waitcnt lgkmcnt(0)")
    fstamp(A, 1)
    A("s_cmp_eq_u32 s%d, 0" % S_BLK)
    for i in range(10):
        A("s_cselect_b32 s%d, s%d, s%d" % (64 + i, 64 + i, 74 + i))
    A("s_mul_i32 s56, s%d, 147456" % S_B)
    make_srd(A, S_X, 64, 65, "s56", "147456")
    A("s_lshl_b32 s56, s%d, 8" % S_H)
    A("s_sub_u32 s57, 4194304, s56")
    make_srd(A, S_WQ, 70, 71, "s56", "s57")
    A("s_lshl_b32 s56, s%d, 5" % S_B)
    A("s_add_u32 s56, s56, s%d" % S_H)
    A("s_lshl_b32 s57, s56, 17")
    make_srd(A, S_K, 66, 67, "s57", "131072")
    make_srd(A, S_V, 68, 69, "s57", "131072")
    A("s_lshl_b32 s57, s%d, 19" % S_HG)
    A("s_lshl_b32 s58, s%d, 8" % S_W)
    A("s_add_u32 s57, s57, s58")
    A("s_sub_u32 s58, 524288, s58")
    make_srd(A, S_WO, 72, 73, "s57", "s58")
    A("s_lshl_b32 s57, s%d, 4" % S_BLK)
    A("s_add_u32 s57, s57, s%d" % S_B)
    A("s_lshl_b32 s57, s57, 3")
    A("s_add_u32 s57, s57, s%d" % S_HG)
    A("s_lshl_b32 s57, s57, 2")
    A("s_add_u32 s57, s57, s%d" % S_W)
    A("s_mul_i32 s57, s57, 36864")
    make_srd(A, S_P, 84, 85, "s57", "36864")
    A("v_lshl_add_u32 v%d, v2, 13, v4" % LS)

    def x_dma(stage):
        out = []
        for i in range(9):
            out.append("s_add_u32 m0, s%d, %d" % (S_XL, stage * 36864 + i * 1024))
            out.append("s_add_u32 s58, s%d, %d" % (S_XG, i * 8192 + stage * 256))
            out.append("XS%d|buffer_load_dwordx4 v%d, %s, s58 offen lds" % (stage, V_XD, srd(S_X)))
        return out
    def wq_loads(s):
        return ["W%d|buffer_load_dwordx4 %s, v%d, %s, s%d offen" % (s, vr(RB1[s % 3] + 4 * j), V_W, srd(S_WQ), S_J + j) for j in range(8)] + \
               ["v_add_u32 v%d, 0x40000, v%d" % (V_W, V_W)]
    if not OPT['pffirst']:
        fstamp(A, 2)
        A.many(x_dma(0))
        fstamp(A, 3)
        A.many(wq_loads(0))
        fstamp(A, 4)
        A.many(wq_loads(1) + wq_loads(2))
        fstamp(A, 5)
    if OPT['wpf']:
        A("v_lshrrev_b32 v%d, 1, v%d" % (SEL, V_T0))
        A("v_lshlrev_b32 v%d, 13, v%d" % (SEL, SEL))
        A("v_and_b32 v%d, 1, v%d" % (SEL + 1, V_T0))
        A("v_lshl_add_u32 v%d, v%d, 7, v%d" % (SEL, SEL + 1, SEL))
        A("s_and_b32 s56, s%d, 7" % S_B)
        A("s_lshl_b32 s56, s56, 19")
        A("s_add_u32 s57, s56, 0x40000")
        A("buffer_load_dword v%d, v%d, %s, s56 offen" % (SEL + 2, SEL, srd(S_WQ)))
        A("buffer_load_dword v%d, v%d, %s, s57 offen" % (SEL + 3, SEL, srd(S_WQ)))
    if OPT['xpf']:
        A("s_and_b32 s56, s%d, 3" % S_HG)
        A("s_lshl_b32 s56, s56, 2")
        A("s_add_u32 s56, s56, s%d" % S_W)
        A("s_mul_i32 s56, s56, 9216")
        A("s_add_u32 s57, s56, 1024")
        A("buffer_load_dword v%d, v%d, %s, s56 offen" % (SEL + 2, V_PF, srd(S_X)))
        A("buffer_load_dword v%d, v%d, %s, s57 offen" % (SEL + 3, V_PF, srd(S_X)))
    if OPT['pffirst']:
        A.many(x_dma(0) + wq_loads(0) + wq_loads(1) + wq_loads(2))
    A.many(x_dma(1))
    if OPT['xall']:
        A.many(x_dma(2) + x_dma(3))
    fstamp(A, 6)
    if OPT['fine'] == "S":
        A("WAITVM XS0")
        fstamp(A, 7)
    A("WAITVM W0")
    fstamp(A, 8)
    if OPT['fine'] == "S":
        A("WAITVM W2")
        fstamp(A, 9)
        A("WAITVM XS1")
        fstamp(A, 10)
    for i in range(3):
        A.many(perms(RB1[0], VF, i))
    A("s_barrier")
    fstamp(A, 11)
    stamp(A, 1)
    A.many(x_reads(XB1[0], 0, True))

    npf = OPT['npf']
    pf_steps = [OPT['pfs0'] + (i * (OPT['pfs1'] - OPT['pfs0'] + 1)) // npf for i in range(npf)] if npf else []
    pfi = [0]
    def qhook(s, sl, when):
        if when == 'pre':
            if s in (3, 7, 11):
                sl[0].append("WAITVM XS%d" % ((s + 1) // 4))
                sl[0].append("s_barrier")
            if s == 15:
                sl[0].append("s_barrier")
            return
        if s == 15:
            spread(sl, v_loads(), 1, 8)
            sl[72] += k_loads(KB[1])
        if s == 13:
            spread(sl, k_loads(KB[0], "K0"), 9, 17)
            sl[30] += ["v_mov_b32 v%d, v%d" % (V_W, LS), "v_add_u32 v%d, 0x1000, v%d" % (V_XD, LS)]
        if s == 1 and not OPT['xall']:
            spread(sl, x_dma(2), 27, 36)
        if s == 4 and not OPT['xall']:
            spread(sl, x_dma(3), 27, 36)
        for i in range(pf_steps.count(s)):
            spread(sl, pf_instr(pfi[0]), 45 + 5 * i, 49 + 5 * i); pfi[0] += 1
    def conv_tile(t, tmp, scale, sink):
        out = []
        for s in range(4):
            b = tmp[(4 * t + s) % len(tmp)]
            inv = acc_reg(t, 0, s)[0] == 'v'
            if not inv:
                for e in range(8):
                    out.append("v_accvgpr_read_b32 v%d, %s" % (b + e, acc_reg(t, e, s)))
                if scale and scale[0] == 's':
                    for p in range(4):
                        out.append("v_pk_mul_f32 %s, %s, s[%d:%d]" % (vr(b + 2 * p, 2), vr(b + 2 * p, 2), scale[1], scale[1] + 1))
                elif scale:
                    for e in range(8):
                        out.append("v_mul_f32 v%d, v%d, v%d" % (b + e, scale[1], b + e))
                src = [b + e for e in range(8)]
            elif scale:
                for e in range(8):
                    out.append("v_mul_f32 v%d, %s%d, %s" % (b + e, scale[0], scale[1], acc_reg(t, e, s)))
                src = [b + e for e in range(8)]
            else:
                src = [int(acc_reg(t, e, s)[1:]) for e in range(8)]
            for p in range(4):
                out.append("v_cvt_pk_bf16_f32 v%d, v%d, v%d" % (b + 8 + p, src[2 * p], src[2 * p + 1]))
            out += sink(t, s, b + 8)
        return out
    def qfinish(t):
        return conv_tile(t, [168, 180, 192, 0, 12], ('s', S_C),
                         lambda t, s, r: ["ds_write_b128 v%d, %s offset:%d" % (V_Q, vr(r), (t * 4 + s) * 1024)])
    proj_loop(A, RB1, XB1, wq_loads, "W", qhook, None, qfinish)
    if OPT['fine'] in ("W", "S"):
        fine_flush(A)
    stamp(A, 2)
    def convert(A, tmp, scale_of_t, sink):
        n = 0
        for t in range(9):
            for s in range(4):
                b = tmp[n % len(tmp)]; n += 1
                for e in range(8):
                    r = acc_reg(t, e, s)
                    if r[0] == 'a':
                        A("v_accvgpr_read_b32 v%d, %s" % (b + e, r))
                    elif scale_of_t is None:
                        A("v_mov_b32 v%d, %s" % (b + e, r))
                if scale_of_t is not None:
                    for e in range(8):
                        r = acc_reg(t, e, s)
                        src = "v%d" % (b + e) if r[0] == 'a' else r
                        A("v_mul_f32 v%d, %s, %s" % (b + e, scale_of_t(t), src))
                for p in range(4):
                    A("v_cvt_pk_bf16_f32 v%d, v%d, v%d" % (b + 8 + p, b + 2 * p, b + 2 * p + 1))
                sink(t, s, b + 8)
    for u in range(32):
        A("v_mov_b32 v%d, 0" % (ACCV + u))
    A("s_waitcnt lgkmcnt(0)")
    for u in range(4):
        A("v_mov_b32 v%d, 0" % (LS + u))

    def q_read(t, s):
        return "ds_read_b128 %s, v%d offset:%d" % (vr(QB + 4 * s), V_Q, (t * 4 + s) * 1024)
    def a_mfmas(kb, sb, t, first):
        out = []
        for s in range(4):
            for kt in range(2):
                c = ("0" if first else vr(NM + 4 * t)) if s == 0 else vr(sb + 4 * kt)
                out.append("%s %s, %s, %s, %s" % (MFMA, vr(sb + 4 * kt), vr(kb + 4 * (kt * 4 + s)), vr(QB + 4 * s), c))
        return out
    def c_mfmas(t, pb, first):
        out = ["%s %s, %s, %s, %s" % (MFMA, vr(LS), vr(SEL), vr(pb), vr(LS))]
        for e in range(8):
            c = "0" if first else acc(t, e)
            out.append("%s %s, %s, %s, %s" % (MFMA, acc(t, e), vr(VF + 4 * e), vr(pb), c))
        return out
    def wo_loads(s):
        out = []
        for j in range(8):
            out.append("O%d|buffer_load_dwordx4 %s, v%d, %s, s%d offen offset:%d" % (
                s, vr(RB2[s % 3] + 4 * j), V_W if j < 4 else V_XD, srd(S_WO), S_WOFF, (j & 3) * 1024))
        return out + ["s_add_u32 s%d, s%d, 32768" % (S_WOFF, S_WOFF)]

    stamp(A, 3)
    A.many([q_read(0, s) for s in range(4)])
    A("WAITVM K0 0")
    A.many(a_mfmas(KB[0], SB[0], 0, True))
    A.many([q_read(1, s) for s in range(4)])
    A("WAITVM V")
    for i in range(4):
        A.many(perms(VR, VF, i))

    def iteration(A, bpar, t, kind, site):
        par = (bpar + t) & 1
        has_a = not (kind == 'last' and t == 8) and kind != 'drain'
        has_c = not (kind == 'first' and t == 0)
        has_b = kind != 'drain'
        amf = a_mfmas(KB[bpar] if t < 8 else KB[bpar ^ 1], SB[par ^ 1], (t + 1) % 9, kind == 'first' and t < 8) if has_a else []
        cmf = c_mfmas((t - 1) % 9, PB[par ^ 1], kind == 'first') if has_c else []
        mf = amf + cmf
        nm = len(mf); na = len(amf)
        sl = [[] for _ in range(nm + 1)]
        sl[0].append("WAITVM K 0" if (t == 8 and has_a) else "s_waitcnt lgkmcnt(0)")
        S = SB[par]; P = PB[par]; nmr = NM + 4 * t
        def G(x):
            return min(nm, (x * nm) // 17)
        if has_b:
            ex = ["v_exp_f32 v%d, v%d" % (S + i, S + i) for i in range(8)]
            cv = ["v_cvt_pk_bf16_f32 v%d, v%d, v%d" % (P + p, S + 2 * p, S + 2 * p + 1) for p in range(4)]
            if kind == 'first':
                pre = max8(V_T0, S) + xlane_reduce(V_T0, V_T1, "v_max_f32")
                pre += ["v_sub_f32 v%d, 0, v%d" % (nmr + r, V_T0) for r in range(4)]
                sb = ["v_sub_f32 v%d, v%d, v%d" % (S + i, S + i, V_T0) for i in range(8)]
                spread(sl, pre, G(0), G(5))
                spread(sl, sb, G(6), G(8))
                spread(sl, ex, G(9), G(15))
                spread(sl, ["s_nop 0"] + cv, G(16), G(17))
            else:
                spread(sl, max8(V_T0, S) + ["v_cmp_lt_f32 vcc, s%d, v%d" % (S_THR, V_T0)], G(0), G(2))
                sl[G(4)].append("s_cbranch_vccnz K1_rare_%s" % site)
                sl[G(4)].append("K1_back_%s:" % site)
                rare_sites.append((site, t, S))
                spread(sl, ex, G(4), G(12))
                spread(sl, cv, G(13), G(16))
        if has_a and (kind in ('first', 'mid') or (kind == 'last' and t <= 6)):
            for s in range(4):
                sl[2 * s + 2].append(q_read((t + 2) % 9, s))
        if has_b:
            sl[min(nm, na + 2)].append("ds_read_b128 %s, v%d offset:%d" % (vr(SEL), V_L16, 0) .replace("offset:0", "offset:%d" % 0) if False else
                                       "SELREAD%d" % t)
        if t == 8 and kind in ('first', 'mid'):
            spread(sl, k_loads(KB[bpar]), G(2), G(11))
        if kind != 'first' and kind != 'drain':
            if t == 0:
                sl[na + 2].append("WAITVM V")
                spread(sl, perms(VR, VF, 0), na + 3, na + 5)
                spread(sl, perms(VR, VF, 1), na + 5, na + 7)
                spread(sl, perms(VR, VF, 2), na + 7, na + 9)
            if t == 1:
                spread(sl, perms(VR, VF, 3), 1, 4)
        if t == 2 and kind in ('first', 'mid'):
            spread(sl, v_loads(), G(2), G(11))
        if kind == 'last' and t == 2:
            spread(sl, wo_loads(0), G(2), G(11))
        if kind == 'last' and t == 4:
            spread(sl, wo_loads(1), G(2), G(11))
        if kind == 'last' and t == 8:
            spread(sl, wo_loads(2), G(2), G(8))
        for g in range(nm + 1):
            sl[g] = [("ds_read_b128 %s, v%d offset:%d" % (vr(SEL), V_SELA, int(x[7:]) * 1024)) if x.startswith("SELREAD") else x for x in sl[g]]
        weave(A, mf, sl)

    V_SELA = V_PF
    A("v_add_u32 v%d, %d, v%d" % (V_SELA, SEL_OFF, V_L16))
    for t in range(9):
        iteration(A, 0, t, 'first', None)
    stamp(A, 4)
    A("s_mov_b32 s%d, 7" % S_CNT)
    A.label("K1_aloop")
    w0 = len(A.waits)
    for t in range(9):
        iteration(A, 1, t, 'mid', "o%d" % t)
    for t in range(9):
        iteration(A, 0, t, 'mid', "e%d" % t)
    w1 = len(A.waits)
    B = Asm(); B.vm = list(A.vm); saved = list(rare_sites)
    for t in range(9):
        iteration(B, 1, t, 'mid', "o%d" % t)
    for t in range(9):
        iteration(B, 0, t, 'mid', "e%d" % t)
    assert B.waits == A.waits[w0:w1], (B.waits, A.waits[w0:w1])
    del rare_sites[len(saved):]
    A("s_sub_u32 s%d, s%d, 1" % (S_CNT, S_CNT))
    A("s_cmp_lg_u32 s%d, 0" % S_CNT)
    A("s_cbranch_scc1 K1_aloop")
    A.vm.append("V")
    for t in range(9):
        iteration(A, 1, t, 'last', "l%d" % t)
    iteration(A, 0, 0, 'drain', None)
    stamp(A, 5)
    RL = 200
    A("v_and_b32 v%d, 0xf0, v%d" % (V_T0, V_L16))
    A("v_lshrrev_b32 v%d, 2, v%d" % (V_T0, V_T0))
    A("s_nop 4")
    for t in range(9):
        A("ds_bpermute_b32 v%d, v%d, v%d offset:%d" % (168 + t, V_T0, LS + (t & 3), 64 * (t >> 2)))
    A("s_waitcnt lgkmcnt(0)")
    for t in range(9):
        A("v_rcp_f32 v%d, v%d" % (RL + t, 168 + t))
    convert(A, [128, 140, 152, 164, 176, 188], lambda t: "v%d" % (RL + t),
            lambda t, s, r: A("ds_write_b128 v%d, %s offset:%d" % (V_Q, vr(r), (s * 9 + t) * 1024)))
    A("v_mov_b32 v%d, v%d" % (V_X, V_L16))
    A("WAITVM O0")
    for i in range(3):
        A.many(perms(RB2[0], VF, i))
    A("s_waitcnt lgkmcnt(0)")
    A("s_barrier")
    stamp(A, 6)
    A.many(x_reads(XB2[0], 0, False))
    def ofinish(t):
        return conv_tile(t, [96, 108, 0, 12, 128, 140], None,
                         lambda t, s, r: ["s_mov_b32 s56, %d" % ((s * 9 + t) * 1024),
                                          "buffer_store_dwordx4 %s, v%d, %s, s56 offen" % (vr(r), V_L16, srd(S_P))])
    proj_loop(A, RB2, XB2, wo_loads, "O", lambda s, sl, when: None, None, ofinish)
    if OPT['fine'] == "O":
        fine_flush(A)
    if OPT['prof']:
        A("s_waitcnt vmcnt(0)")
    stamp(A, 7)
    stamp_flush(A, 8, 84, S_W)
    A.label("K1_done")
    A("s_endpgm")
    for site, t, S in rare_sites:
        nmr = NM + 4 * t
        A.label("K1_rare_%s" % site)
        A.many(xlane_reduce(V_T0, V_T1, "v_max_f32"))
        A("v_max_f32 v%d, 0, v%d" % (V_T0, V_T0))
        A("v_sub_f32 v%d, 0, v%d" % (V_T1, V_T0))
        A("v_exp_f32 v%d, v%d" % (V_T1, V_T1))
        for r in range(4):
            A("v_sub_f32 v%d, v%d, v%d" % (nmr + r, nmr + r, V_T0))
        for i in range(8):
            A("v_sub_f32 v%d, v%d, v%d" % (S + i, S + i, V_T0))
        A("s_mov_b32 s56, 0x%x" % ((0xffff << (16 * (t >> 2))) & 0xffffffff))
        A("s_mov_b32 s57, 0x%x" % ((0xffff << (16 * (t >> 2))) >> 32))
        A("v_cndmask_b32 v%d, 1.0, v%d, s[56:57]" % (V_T0, V_T1))
        A("v_mul_f32 v%d, v%d, v%d" % (LS + (t & 3), LS + (t & 3), V_T0))
        for e in range(8):
            for r in range(4):
                reg = acc_reg(t, e, r)
                if reg[0] == 'a':
                    A("v_accvgpr_read_b32 v%d, %s" % (V_T0, reg))
                    A("v_mul_f32 v%d, v%d, v%d" % (V_T0, V_T0, V_T1))
                    A("v_accvgpr_write_b32 %s, v%d" % (reg, V_T0))
                else:
                    A("v_mul_f32 %s, %s, v%d" % (reg, reg, V_T1))
        A("s_nop 1")
        A("s_branch K1_back_%s" % site)

def gen_k2(A):
    A.raw(".globl %s" % K2)
    A.raw(".p2align 8")
    A.raw(".type %s,@function" % K2)
    A.label(K2)
    A("s_cmp_ge_u32 s2, 1152")
    A("s_cbranch_scc1 K2_done")
    A("s_load_dwordx2 s[64:65], s[0:1], 80")
    A("s_load_dwordx2 s[66:67], s[0:1], 96")
    A("s_mul_hi_u32 s4, s2, 0x71c71c8")
    A("s_mul_i32 s5, s4, 36")
    A("s_sub_u32 s5, s2, s5")
    A("v_lshrrev_b32 v1, 6, v0")
    A("v_and_b32 v2, 63, v0")
    A("s_nop 0")
    A("v_readfirstlane_b32 s6, v1")
    A("s_lshl_b32 s5, s5, 2")
    A("s_add_u32 s5, s5, s6")
    A("s_mul_hi_u32 s7, s5, 0x1c71c71d")
    A("s_mul_i32 s12, s7, 9")
    A("s_sub_u32 s12, s5, s12")
    A("v_lshlrev_b32 v3, 4, v2")
    A("s_waitcnt lgkmcnt(0)")
    A("s_mul_i32 s13, s4, %d" % (8 * PART_BYTES))
    A("s_lshl_b32 s14, s5, 10")
    A("s_add_u32 s13, s13, s14")
    A("s_add_u32 s8, s66, s13")
    A("s_addc_u32 s9, s67, 0")
    A("s_mov_b32 s10, %d" % (7 * PART_BYTES + 1024))
    A("s_mov_b32 s11, 0x00020000")
    for h in range(8):
        A("s_mov_b32 s15, %d" % (h * PART_BYTES))
        A("buffer_load_dwordx4 %s, v3, s[8:11], s15 offen" % vr(8 + 4 * h))
    A("s_and_b32 s13, s4, 15")
    A("s_lshr_b32 s14, s4, 4")
    A("s_mul_i32 s13, s13, 144")
    A("s_lshl_b32 s12, s12, 4")
    A("s_add_u32 s13, s13, s12")
    A("s_lshl_b32 s13, s13, 11")
    A("s_lshl_b32 s14, s14, 10")
    A("s_add_u32 s13, s13, s14")
    A("s_lshl_b32 s14, s7, 6")
    A("s_add_u32 s13, s13, s14")
    A("v_and_b32 v4, 15, v2")
    A("v_lshrrev_b32 v5, 4, v2")
    A("v_lshlrev_b32 v4, 11, v4")
    A("v_lshl_add_u32 v4, v5, 4, v4")
    A("s_mov_b32 s16, s64")
    A("s_mov_b32 s17, s65")
    A("s_mov_b32 s18, %d" % (16 * 144 * 1024 * 2))
    A("s_mov_b32 s19, 0x00020000")
    for h in range(8):
        A("s_waitcnt vmcnt(%d)" % (7 - h))
        for p in range(4):
            src = 8 + 4 * h + p
            if h == 0:
                A("v_lshlrev_b32 v%d, 16, v%d" % (40 + 2 * p, src))
                A("v_and_b32 v%d, 0xffff0000, v%d" % (41 + 2 * p, src))
            else:
                A("v_lshlrev_b32 v48, 16, v%d" % src)
                A("v_and_b32 v49, 0xffff0000, v%d" % src)
                A("v_add_f32 v%d, v%d, v48" % (40 + 2 * p, 40 + 2 * p))
                A("v_add_f32 v%d, v%d, v49" % (41 + 2 * p, 41 + 2 * p))
    for p in range(4):
        A("v_cvt_pk_bf16_f32 v%d, v%d, v%d" % (52 + p, 40 + 2 * p, 41 + 2 * p))
    A("buffer_store_dwordx4 v[52:55], v4, s[16:19], s13 offen")
    A.label("K2_done")
    A("s_endpgm")

def descriptor(A, name, vgpr, accum):
    A.raw(".amdhsa_kernel %s" % name)
    A.raw("  .amdhsa_next_free_vgpr %d" % vgpr)
    A.raw("  .amdhsa_next_free_sgpr 102")
    A.raw("  .amdhsa_accum_offset %d" % accum)
    A.raw("  .amdhsa_group_segment_fixed_size 0")
    A.raw("  .amdhsa_kernarg_size 104")
    A.raw("  .amdhsa_user_sgpr_count 2")
    A.raw("  .amdhsa_user_sgpr_kernarg_segment_ptr 1")
    A.raw("  .amdhsa_system_sgpr_workgroup_id_x 1")
    A.raw(".end_amdhsa_kernel")

def main(path):
    A = Asm()
    hdr = open("cdna_kernels/%s.s.ref" % NAME).read().splitlines()
    for ln in hdr:
        if ln.startswith("; @launch"):
            break
        if ln.startswith("; Override") or ln.startswith("; grid=ceil"):
            continue
        A.raw(ln)
    A.raw("; @launch kernel=%s grid=(256,1,1) block=(256,1,1) lds=%d" % (K1, LDS_BYTES))
    A.raw("; @launch kernel=%s grid=(1152,1,1) block=(256,1,1) lds=0" % K2)
    A.raw('.amdgcn_target "amdgcn-amd-amdhsa--gfx950"')
    A.raw(".text")
    gen_k1(A)
    gen_k2(A)
    A.raw('.section .rodata,"a"')
    A.raw(".p2align 6")
    descriptor(A, K1, 512, 256)
    A.raw(".p2align 6")
    descriptor(A, K2, 56, 56)
    open(path, "w").write(A.text())

if __name__ == "__main__":
    path = "cdna_kernels/%s.s" % NAME
    for a in sys.argv[1:]:
        if a.startswith("--"):
            k = a[2:]
            if "=" in k:
                k, v = k.split("="); OPT[k] = int(v) if v.isdigit() else v
            else:
                OPT[k] = True
        else:
            path = a
    main(path)
```

```python
import sys, struct

NAME = "concat_heads__gqa_block_cached__gqa_block_cached__near_ridge"
K1 = NAME + "_kernel"
K2 = "reduce_kernel"

SCALE = 0.08838834764831845 * 1.4426950408889634
THR = 16.0
PART_BYTES = 147456
NSLOT = 12
SEL_OFF = 147456
ML_OFF = SEL_OFF + 9 * 1024
LDS_BYTES = ML_OFF + 4 * 1280

OPT = dict(o2=0, onebar=1, epi=1, rdf='nt', v1early=1, vt1=1, kt7=1, rot=0, stf='sc1', map2=1, v1only=1, npf=0, pfs0=2, pfs1=11, npf2=0, apf=0, apfd=0, kvf='nt', prof=False, noadv=False, cpf=3, tmask=1, tval=1)

def f32bits(x):
    return struct.unpack("<I", struct.pack("<f", x))[0]

class Asm:
    def __init__(self):
        self.lines = []
        self.vms = [[]]
        self.waits = []
    def __call__(self, s):
        if s.endswith(":"):
            self.lines.append(s); return
        if s.startswith("RETAG"):
            _, a, b = s.split()
            self.vms = [[b if t == a else t for t in vm] for vm in self.vms]
            return
        if s.startswith("WAITVM"):
            parts = s.split()
            tag = parts[1]
            n = 63
            for vm in self.vms:
                assert tag in vm, tag
                idx = max(i for i, t in enumerate(vm) if t == tag)
                n = min(n, len(vm) - 1 - idx)
            self.waits.append(n)
            s = "s_waitcnt vmcnt(%d)" % n
            if len(parts) > 2:
                s += " lgkmcnt(%s)" % parts[2]
            self.lines.append("    " + s); return
        tag = None
        if "|" in s:
            tag, s = s.split("|", 1)
        elif s.startswith("buffer_") or s.startswith("global_"):
            tag = "-"
        if tag is not None and not tag.startswith("?"):
            for i, vm in enumerate(self.vms):
                if getattr(self, "skipN", False) and tag.startswith("NO") and i > 0:
                    continue
                vm.append(tag)
        self.lines.append("    " + s)
    def many(self, l):
        for s in l: self(s)
    def label(self, l):
        self.lines.append(l + ":")
    def raw(self, s):
        self.lines.append(s)
    def text(self):
        return "\n".join(self.lines) + "\n"

def vr(b, n=4):
    return "v[%d:%d]" % (b, b + n - 1)
def ar(b, n=4):
    return "a[%d:%d]" % (b, b + n - 1)

def spread(slots, instrs, g0, g1):
    n = len(instrs); m = g1 - g0 + 1
    for i, ins in enumerate(instrs):
        slots[g0 + (i * m) // n].append(ins)

def weave(A, mfmas, slots):
    for i, m in enumerate(mfmas):
        for s in slots[i]: A(s)
        A(m)
    for s in slots[len(mfmas)]: A(s)

MFMA = "v_mfma_f32_16x16x32_bf16"

KB = [32, 0]
VF = 64
VR = 96
QB = 128
SB = [144, 152]
PB = [160, 164]
NM = 168
LS, SEL = 204, 208
V_OFFK0, V_OFFK1, V_OFFV0, V_OFFV1, V_Q, V_T0, V_T1, V_L16, V_W, V_X, V_XD, V_SELA = range(212, 224)
ACCV = 224
RB1, XB1 = [0, 32, 168], [96, 132]
RB2, XB2 = [32, 96, 0], [128, 164]
RB3, XA3 = [128, 144, 160, 176], [128, 164]
V_XD2, V_XO = 210, 211

def acc(t, e):
    u = t * 8 + e
    return ar(4 * u) if u < 64 else vr(ACCV + 4 * (u - 64))
def acc_reg(t, e, r):
    u = t * 8 + e
    return "a%d" % (4 * u + r) if u < 64 else "v%d" % (ACCV + 4 * (u - 64) + r)
def acc3(t, e):
    return ar(16 * t + 4 * e) if t < 8 else vr(ACCV + 4 * e)
def acc3_reg(t, e, r):
    return "a%d" % (16 * t + 4 * e + r) if t < 8 else "v%d" % (ACCV + 4 * e + r)

S_X, S_WQ, S_K, S_V, S_WO, S_P = 8, 12, 16, 20, 24, 28
S_HG, S_WOFF, S_TYPE, S_RND = 32, 33, 34, 35
S_J = 36
S_PLO, S_PHI, S_CNT, S_KOFF, S_VOFF, S_HALF, S_THR = 44, 45, 46, 47, 48, 49, 50
S_BLK, S_B, S_H, S_W = 51, 52, 53, 54
S_XL, S_XG, S_C = 4, 5, 6

def srd(s):
    return "s[%d:%d]" % (s, s + 3)

def perms(raw, frag, i, w=4):
    out = []
    for p in range(4):
        a = raw + w * (2 * p) + i
        b = raw + w * (2 * p + 1) + i
        out.append("v_perm_b32 v%d, v%d, v%d, s%d" % (frag + 4 * (2 * i) + p, b, a, S_PLO))
        out.append("v_perm_b32 v%d, v%d, v%d, s%d" % (frag + 4 * (2 * i + 1) + p, b, a, S_PHI))
    return out

def adv(s, step=8192):
    if OPT['noadv']: return []
    return ["s_add_u32 s%d, s%d, %d" % (s, s, step), "s_and_b32 s%d, s%d, 0x1ffff" % (s, s)]

def k_loads(buf, tag="K"):
    out = []
    for kt in range(2):
        for s in range(4):
            out.append("%s|buffer_load_dwordx4 %s, v%d, %s, s%d offen offset:%d" % (
                tag, vr(buf + 4 * (kt * 4 + s)), V_OFFK0 + kt, srd(S_K), S_KOFF, 128 * (s >> 1) + 16 * (s & 1)) + OPT['kvf'])
    return out + adv(S_KOFF)

def v_loads(tag="V"):
    out = []
    for j in range(8):
        out.append("%s|buffer_load_dwordx4 %s, v%d, %s, s%d offen offset:%d" % (
            tag, vr(VR + 4 * j), V_OFFV0 + (j >> 2), srd(S_V), S_VOFF, (j & 3) * 256) + OPT['kvf'])
    return out + adv(S_VOFF)

def pf_piece(i):
    j = i >> 1
    out = ["s_mov_b32 s55, %d" % ((j >> 1) * 8192 + (i & 1) * 4096)]
    for q in range(4):
        out.append("PF|buffer_load_dwordx4 %s, v%d, %s, s55 offen offset:%d" % (vr(SEL), V_L16, srd(S_V if j & 1 else S_K), q * 1024))
    return out

def xlane_reduce(reg, tmp, op):
    return ["v_mov_b32 v%d, v%d" % (tmp, reg), "s_nop 1",
            "v_permlane16_swap_b32 v%d, v%d" % (tmp, reg), "s_nop 1",
            "%s v%d, v%d, v%d" % (op, reg, reg, tmp),
            "v_mov_b32 v%d, v%d" % (tmp, reg), "s_nop 1",
            "v_permlane32_swap_b32 v%d, v%d" % (tmp, reg), "s_nop 1",
            "%s v%d, v%d, v%d" % (op, reg, reg, tmp)]

def max8(dst, S):
    return ["v_max3_f32 v%d, v%d, v%d, v%d" % (dst, S, S + 1, S + 2),
            "v_max3_f32 v%d, v%d, v%d, v%d" % (dst, dst, S + 3, S + 4),
            "v_max3_f32 v%d, v%d, v%d, v%d" % (dst, dst, S + 5, S + 6),
            "v_max_f32 v%d, v%d, v%d" % (dst, dst, S + 7)]

def calc_xd(dst, t0):
    return ["v_bfe_u32 v%d, v%d, 6, 3" % (dst, V_L16),
            "v_lshlrev_b32 v%d, 10, v%d" % (dst, dst),
            "v_lshrrev_b32 v%d, 9, v%d" % (t0, V_L16),
            "v_lshl_add_u32 v%d, v%d, 6, v%d" % (dst, t0, dst),
            "v_lshrrev_b32 v%d, 3, v%d" % (t0, V_L16),
            "v_xor_b32 v%d, v%d, v%d" % (t0, t0, V_L16),
            "v_and_b32 v%d, 32, v%d" % (t0, t0),
            "v_add_u32 v%d, v%d, v%d" % (dst, t0, dst),
            "v_and_b32 v%d, 16, v%d" % (t0, V_L16),
            "v_add_u32 v%d, v%d, v%d" % (dst, t0, dst)]
def calc_wo(dst, dst2, t0):
    return ["v_bfe_u32 v%d, v%d, 4, 2" % (dst, V_L16),
            "v_lshlrev_b32 v%d, 6, v%d" % (dst, dst),
            "v_bfe_u32 v%d, v%d, 6, 2" % (t0, V_L16),
            "v_lshl_add_u32 v%d, v%d, 4, v%d" % (dst, t0, dst),
            "v_lshrrev_b32 v%d, 8, v%d" % (t0, V_L16),
            "v_lshl_add_u32 v%d, v%d, 13, v%d" % (dst, t0, dst),
            "v_add_u32 v%d, 0x1000, v%d" % (dst2, dst)]
def calc_w2(dst, t0):
    return ["v_bfe_u32 v%d, v%d, 4, 4" % (dst, V_L16),
            "v_lshlrev_b32 v%d, 3, v%d" % (dst, dst),
            "v_lshrrev_b32 v%d, 8, v%d" % (t0, V_L16),
            "v_lshl_add_u32 v%d, v%d, 16, v%d" % (dst, t0, dst),
            "v_add_u32 v%d, 0x200000, v%d" % (dst, dst)]

PROF_OFF = 64 << 20
STAMP_REGS = list(range(64, 84)) + list(range(86, 98))
def stamp(A, k, rnd=False):
    if not OPT['prof']:
        return
    A("s_memtime s[100:101]")
    A("s_waitcnt lgkmcnt(0)")
    if rnd:
        A("s_cmp_eq_u32 s%d, 0" % S_RND)
        A("s_cselect_b32 s%d, s100, s%d" % (STAMP_REGS[k], STAMP_REGS[k]))
        A("s_cselect_b32 s%d, s%d, s100" % (STAMP_REGS[k + 8], STAMP_REGS[k + 8]))
    else:
        A("s_mov_b32 s%d, s100" % STAMP_REGS[k])
def stamp_flush(A, n):
    if not OPT['prof']:
        return
    A("s_lshl_b32 s56, s2, 2")
    A("s_add_u32 s56, s56, s%d" % S_W)
    A("s_lshl_b32 s56, s56, 7")
    A("s_add_u32 s56, s56, %d" % PROF_OFF)
    A("s_add_u32 s60, s84, s56")
    A("s_addc_u32 s61, s85, 0")
    A("s_mov_b32 s62, 128")
    A("s_mov_b32 s63, 0x00020000")
    A("v_mov_b32 v1, 0")
    for k in range(n):
        A("v_mov_b32 v%d, s%d" % (2 + k, STAMP_REGS[k]))
        A("buffer_store_dword v%d, v1, s[60:63], 0 offen offset:%d" % (2 + k, 4 * k))

def make_srd(A, s, lo, hi, off, size):
    A("s_add_u32 s%d, s%d, %s" % (s, lo, off)); A("s_addc_u32 s%d, s%d, 0" % (s + 1, hi))
    A("s_mov_b32 s%d, %s" % (s + 2, size))
    A("s_mov_b32 s%d, 0x00020000" % (s + 3))

S_XR = 60
def x_dma(stage, areg, cond=""):
    out = []
    for i in range(9):
        out.append("s_add_u32 m0, s%d, %d" % (S_XL, stage * 36864 + i * 1024))
        if OPT['rot']:
            out.append("s_add_u32 s58, s%d, %d" % (S_XR + stage, i * 8192))
        else:
            out.append("s_add_u32 s58, s%d, %d" % (S_XG, i * 8192 + stage * 256))
        out.append("%sXS%d|buffer_load_dwordx4 v%d, %s, s58 offen lds" % (cond, stage, areg, srd(S_X)))
    return out

def xq_reads(dst, ks, wrap=False):
    out = ["ds_read_b128 %s, v%d offset:%d" % (dst(t), V_X, t * 2048 + (ks & 1) * 512) for t in range(9)]
    if ks & 1:
        out.append("v_add_u32 v%d, 0x%x, v%d" % (V_X, (18432 - 147456) & 0xffffffff if wrap else 18432, V_X))
    return out

def conv_tile(t, tmp, scale, sink, areg=acc_reg):
    out = []
    for s in range(4):
        b = tmp[(4 * t + s) % len(tmp)]
        inv = areg(t, 0, s)[0] == 'v'
        if not inv:
            for e in range(8):
                out.append("v_accvgpr_read_b32 v%d, %s" % (b + e, areg(t, e, s)))
            if scale and scale[0] == 's':
                for p in range(4):
                    out.append("v_pk_mul_f32 %s, %s, s[%d:%d]" % (vr(b + 2 * p, 2), vr(b + 2 * p, 2), scale[1], scale[1] + 1))
            elif scale and scale[0] == 'p':
                for p in range(4):
                    out.append("v_pk_mul_f32 %s, %s, %s op_sel_hi:[1,0]" % (vr(b + 2 * p, 2), vr(b + 2 * p, 2), vr(scale[1], 2)))
            elif scale:
                for e in range(8):
                    out.append("v_mul_f32 v%d, v%d, v%d" % (b + e, scale[1], b + e))
            src = [b + e for e in range(8)]
        elif scale:
            for e in range(8):
                out.append("v_mul_f32 v%d, %s%d, %s" % (b + e, 's' if scale[0] == 's' else 'v', scale[1], areg(t, e, s)))
            src = [b + e for e in range(8)]
        else:
            src = [int(areg(t, e, s)[1:]) for e in range(8)]
        for p in range(4):
            out.append("v_cvt_pk_bf16_f32 v%d, v%d, v%d" % (b + 8 + p, src[2 * p], src[2 * p + 1]))
        out += sink(t, s, b + 8)
    return out

def proj_loop(A, nsteps, RB, XB, xreads, wloads, wtag, hook, finish):
    L = nsteps - 1
    for s in range(nsteps):
        par = s & 1
        mf = []
        if s < L:
            for e in range(8):
                for t in range(9):
                    c = "0" if s == 0 else acc(t, e)
                    mf.append("%s %s, %s, %s, %s" % (MFMA, acc(t, e), vr(VF + 4 * e), vr(XB[par] + 4 * t), c))
        else:
            for t in range(9):
                for e in range(8):
                    mf.append("%s %s, %s, %s, %s" % (MFMA, acc(t, e), vr(VF + 4 * e), vr(XB[par] + 4 * t), acc(t, e)))
        sl = [[] for _ in range(73)]
        sl[0].append("s_waitcnt lgkmcnt(0)")
        spread(sl, perms(RB[s % 3], VF, 3), *((1, 8) if s < L else (0, 3)))
        hook(s, sl, 'pre')
        if s < L:
            spread(sl, xreads(XB[par ^ 1], s + 1), 1, 10)
        if s + 3 < nsteps:
            spread(sl, wloads(s + 3), 9, 17)
        if s < L:
            sl[18].append("WAITVM %s%d" % (wtag, s + 1))
            spread(sl, perms(RB[(s + 1) % 3], VF, 0), 19, 26)
            spread(sl, perms(RB[(s + 1) % 3], VF, 1), 37, 44)
            spread(sl, perms(RB[(s + 1) % 3], VF, 2), 55, 62)
        else:
            for t in range(8):
                spread(sl, finish(t), 8 * (t + 1) + 2, min(72, 8 * (t + 2) + 1))
            sl[72] += finish(8)
        hook(s, sl, 'post')
        weave(A, mf, sl)

def wo_loads(s):
    global RB2
    out = []
    for j in range(8):
        out.append("O%d|buffer_load_dwordx4 %s, v%d, %s, s%d offen offset:%d" % (
            s, vr(RB2[s % 3] + 4 * j), V_W if j < 4 else V_XD, srd(S_WO), S_WOFF, (j & 3) * 1024))
    return out + ["s_add_u32 s%d, s%d, 32768" % (S_WOFF, S_WOFF)]

RB4 = [96, 112, 0, 16]
S_PASS = S_RND
def wo2_loads(s, cond=""):
    out = []
    for j in range(8):
        out.append("%sO%d|buffer_load_dwordx2 %s, v%d, %s, s%d offen offset:%d" % (
            cond, s, vr(RB4[s & 3] + 2 * j, 2), V_W if j < 4 else V_XD, srd(S_WO), S_WOFF, (j & 3) * 1024))
    if (s & 15) == 15:
        return out + ["s_mov_b32 s%d, 128" % S_WOFF]
    return out + ["s_add_u32 s%d, s%d, 32768" % (S_WOFF, S_WOFF)]
def calc_wo2(dst, dst2, t0):
    return ["v_bfe_u32 v%d, v%d, 4, 4" % (dst, V_L16),
            "v_lshlrev_b32 v%d, 3, v%d" % (dst, dst),
            "v_lshrrev_b32 v%d, 8, v%d" % (t0, V_L16),
            "v_lshl_add_u32 v%d, v%d, 13, v%d" % (dst, t0, dst),
            "v_add_u32 v%d, 0x1000, v%d" % (dst2, dst)]

def oproj2(A):
    def xr(buf, ks):
        out = ["ds_read_b128 %s, v%d offset:%d" % (vr(buf + 4 * t), V_XO, t * 4096 + (ks & 3) * 1024) for t in range(9)]
        if ks == 15:
            out.append("v_mov_b32 v%d, v%d" % (V_XO, V_L16))
        elif (ks & 3) == 3:
            out.append("v_add_u32 v%d, 36864, v%d" % (V_XO, V_XO))
        return out
    def fin(t):
        out = []
        for sg in range(2):
            b = [32, 44, 80, 240][(2 * t + sg) & 3]
            regs = [(e, 2 * sg + r1) for r1 in range(2) for e in range(4)]
            if t < 8:
                for i, (e, r) in enumerate(regs):
                    out.append("v_accvgpr_read_b32 v%d, %s" % (b + i, acc3_reg(t, e, r)))
                src = [b + i for i in range(8)]
            else:
                src = [int(acc3_reg(t, e, r)[1:]) for (e, r) in regs]
            for p in range(4):
                out.append("v_cvt_pk_bf16_f32 v%d, v%d, v%d" % (b + 8 + p, src[2 * p], src[2 * p + 1]))
            out.append("s_add_u32 s56, s57, %d" % ((sg * 9 + t) * 1024))
            out.append("buffer_store_dwordx4 %s, v%d, %s, s56 offen%s" % (vr(b + 8), V_L16, srd(S_P), OPT['stf']))
        return out
    A("s_mov_b32 s%d, 0" % S_PASS)
    A("s_mov_b32 s57, 0")
    A.many(xr(XB2[0], 0))
    hist1 = list(A.vms[0])
    def body(A):
        for s in range(16):
            par = s & 1
            mf = []
            if s < 15:
                for e in range(4):
                    for t in range(9):
                        c = "0" if s == 0 else acc3(t, e)
                        mf.append("%s %s, %s, %s, %s" % (MFMA, acc3(t, e), vr(VF + 4 * e), vr(XB2[par] + 4 * t), c))
            else:
                for t in range(9):
                    for e in range(4):
                        mf.append("%s %s, %s, %s, %s" % (MFMA, acc3(t, e), vr(VF + 4 * e), vr(XB2[par] + 4 * t), acc3(t, e)))
            sl = [[] for _ in range(37)]
            if s == 0:
                sl[0] += ["WAITVM O0"] + perms(RB4[0], VF, 0, 2)
            sl[0].append("s_waitcnt lgkmcnt(0)")
            spread(sl, perms(RB4[s & 3], VF, 1, 2), *((1, 6) if s < 15 else (0, 0)))
            spread(sl, xr(XB2[par ^ 1], (s + 1) & 15), 1, 10)
            if s + 4 < 16:
                spread(sl, wo2_loads(s + 4), 7, 15)
            else:
                spread(sl, wo2_loads(s + 4 - 16, "N"), 7, 15)
            if s < 15:
                sl[18].append("WAITVM O%d" % (s + 1))
                spread(sl, perms(RB4[(s + 1) & 3], VF, 0, 2), 19, 26)
            else:
                for t in range(7):
                    spread(sl, fin(t), 4 * (t + 2) + 1, 4 * (t + 3))
                sl[36] += fin(7) + fin(8)
            weave(A, mf, sl)
    B = Asm(); B.vms = [list(hist1)]
    body(B)
    hist2 = [t[1:] if t.startswith("NO") else ("-" if t.startswith("O") else t) for t in B.vms[0]]
    class Dual(Asm):
        pass
    A.vms = [hist1, hist2]
    A.label("K1_opass")
    body(A)
    A("s_add_u32 s%d, s%d, 1" % (S_PASS, S_PASS))
    A("s_mov_b32 s57, 18432")
    A("s_cmp_lg_u32 s%d, 2" % S_PASS)
    A("s_cbranch_scc1 K1_opass")

def ofinish(t):
    return conv_tile(t, [96, 108, 0, 12, 128, 140], None,
                     lambda t, s, r: ["s_mov_b32 s56, %d" % ((s * 9 + t) * 1024),
                                      "buffer_store_dwordx4 %s, v%d, %s, s56 offen%s" % (vr(r), V_L16, srd(S_P), OPT['stf'])])

def pre_attention(A):
    for u in range(32):
        A("v_mov_b32 v%d, 0" % (ACCV + u))
    A("v_lshlrev_b32 v%d, 3, v%d" % (V_W, V_L16))
    A("s_waitcnt lgkmcnt(0)")
    for u in range(4):
        A("v_mov_b32 v%d, 0" % (LS + u))

def o2_off(hs, s, t):
    return hs * 36864 + ((s * 4 + t - 5) * 1024 if t >= 5 else 16384 + (s * 5 + t) * 1024)
def ex_off(h, k):
    head = 16 if h == 0 else 20
    base = 0 if h == 0 else 16384
    return base + k * 1024 if k < head else 73728 + base + (k - head) * 1024

def gen_k1(A):
    global RB2
    if OPT['epi']:
        RB2 = [96, 0, 32]
    rare_sites = []
    A.raw(".globl %s" % K1)
    A.raw(".p2align 8")
    A.raw(".type %s,@function" % K1)
    A.label(K1)
    A("s_cmp_ge_u32 s2, 256")
    A("s_cbranch_scc1 K1_done")
    A("s_load_dwordx4 s[64:67], s[0:1], 0")
    A("s_load_dwordx4 s[68:71], s[0:1], 16")
    A("s_load_dwordx2 s[72:73], s[0:1], 32")
    A("s_load_dwordx2 s[74:75], s[0:1], 40")
    A("s_load_dwordx4 s[76:79], s[0:1], 48")
    A("s_load_dwordx4 s[80:83], s[0:1], 64")
    A("s_load_dwordx2 s[84:85], s[0:1], 96")
    if OPT['prof']:
        A("s_memtime s[98:99]")
    A("v_lshrrev_b32 v3, 6, v0")
    A("v_and_b32 v%d, 63, v0" % V_T0)
    A("s_nop 0")
    A("v_readfirstlane_b32 s%d, v3" % S_W)
    A("s_and_b32 s%d, s2, 1" % S_BLK)
    if OPT['map2']:
        A("s_lshr_b32 s56, s2, 3")
        A("s_and_b32 s%d, s56, 7" % S_HG)
        A("s_lshr_b32 s56, s56, 3")
        A("s_lshr_b32 s58, s2, 1")
        A("s_and_b32 s58, s58, 3")
        A("s_lshl_b32 s58, s58, 2")
        A("s_add_u32 s%d, s58, s56" % S_B)
    else:
        A("s_lshr_b32 s56, s2, 3")
        A("s_and_b32 s57, s56, 3")
        A("s_lshr_b32 s58, s2, 1")
        A("s_and_b32 s58, s58, 1")
        A("s_lshl_b32 s58, s58, 2")
        A("s_add_u32 s%d, s57, s58" % S_HG)
        A("s_lshr_b32 s58, s2, 2")
        A("s_and_b32 s58, s58, 1")
        A("s_lshl_b32 s58, s58, 3")
        A("s_lshr_b32 s56, s56, 2")
        A("s_add_u32 s%d, s58, s56" % S_B)
    A("s_and_b32 s%d, s%d, 1" % (S_TYPE, S_HG))
    if OPT.get('only') is not None:
        A("s_and_b32 s56, s%d, %d" % (S_HG, OPT['only']))
        A("s_cmp_lg_u32 s56, 0")
        A("s_cbranch_scc1 K1_done")
    if OPT.get('force') is not None:
        A("s_mov_b32 s%d, %d" % (S_TYPE, OPT['force']))
    A("s_mov_b32 s%d, 0" % S_RND)
    A("s_lshr_b32 s56, s%d, 1" % S_W)
    A("s_and_b32 s57, s%d, 1" % S_W)
    A("s_cmp_eq_u32 s%d, 0" % S_TYPE)
    A("s_cselect_b32 s59, s%d, s56" % S_W)
    A("s_cselect_b32 s%d, 0, s57" % S_HALF)
    A("s_lshl_b32 s58, s%d, 2" % S_HG)
    A("s_add_u32 s%d, s58, s59" % S_H)
    A("v_and_b32 v1, 15, v%d" % V_T0)
    A("v_lshrrev_b32 v2, 4, v%d" % V_T0)
    A("v_lshlrev_b32 v%d, 4, v%d" % (V_L16, V_T0))
    if OPT['cpf']:
        A("s_getpc_b64 s[60:61]")
        A("s_lshl_b32 s58, s%d, 13" % S_W)
        A("v_lshlrev_b32 v%d, 7, v%d" % (SEL, V_T0))
        A("v_add_u32 v%d, s58, v%d" % (SEL, SEL))
        for k in range(OPT['cpf']):
            A("global_load_dword v%d, v%d, s[60:61]" % (SEL + 1, SEL))
            A("v_add_u32 v%d, 0x8000, v%d" % (SEL, SEL))
    A("v_lshlrev_b32 v3, 8, v1")
    A("v_lshl_add_u32 v%d, v2, 5, v3" % V_OFFK0)
    A("v_add_u32 v%d, 0x1000, v%d" % (V_OFFK1, V_OFFK0))
    A("v_and_b32 v3, 3, v1")
    A("v_lshrrev_b32 v4, 2, v1")
    A("v_lshl_add_u32 v4, v3, 2, v4")
    A("v_lshlrev_b32 v4, 4, v4")
    A("v_lshl_add_u32 v%d, v2, 10, v4" % V_OFFV0)
    A("v_add_u32 v%d, 0x1000, v%d" % (V_OFFV1, V_OFFV0))
    A("v_bfe_u32 v3, v1, 1, 1")
    A("v_lshlrev_b32 v3, 3, v3")
    A("v_lshrrev_b32 v7, 2, v1")
    A("v_lshl_add_u32 v3, v7, 1, v3")
    A("v_and_b32 v7, 1, v1")
    A("v_add_u32 v3, v3, v7")
    A("v_lshlrev_b32 v3, 4, v3")
    A("v_lshl_add_u32 v%d, v2, 16, v3" % V_W)
    A.many(calc_xd(V_XD, 7))
    A("v_lshrrev_b32 v3, 3, v1")
    A("v_lshlrev_b32 v3, 10, v3")
    A("v_and_b32 v7, 7, v1")
    A("v_lshl_add_u32 v3, v7, 6, v3")
    A("v_lshrrev_b32 v7, 1, v1")
    A("v_xor_b32 v7, v7, v2")
    A("v_and_b32 v7, 2, v7")
    A("v_lshl_add_u32 v3, v7, 4, v3")
    A("v_and_b32 v7, 1, v2")
    A("v_lshl_add_u32 v%d, v7, 4, v3" % V_X)
    A("s_mul_i32 s58, s59, 36864")
    A("v_add_u32 v%d, s58, v%d" % (V_Q, V_L16))
    A("v_add_u32 v%d, %d, v%d" % (V_SELA, SEL_OFF, V_L16))
    A("s_mul_i32 s%d, s56, 18432" % S_XL)
    A("s_mul_i32 s58, s57, 9216")
    A("s_add_u32 s%d, s%d, s58" % (S_XL, S_XL))
    A("s_lshl_b32 s%d, s56, 7" % S_XG)
    A("s_mul_i32 s58, s57, 73728")
    A("s_add_u32 s%d, s%d, s58" % (S_XG, S_XG))
    for j in range(8):
        A("s_mov_b32 s%d, %d" % (S_J + j, j * 8192))
    A("s_mov_b32 s%d, 0x05040100" % S_PLO)
    A("s_mov_b32 s%d, 0x07060302" % S_PHI)
    A("s_mov_b32 s%d, 0x%08x" % (S_C, f32bits(SCALE)))
    A("s_mov_b32 s%d, 0x%08x" % (S_C + 1, f32bits(SCALE)))
    A("s_mov_b32 s%d, 0x%08x" % (S_THR, f32bits(THR)))
    A("s_lshl_b32 s%d, s%d, 16" % (S_KOFF, S_HALF))
    A("s_mov_b32 s%d, s%d" % (S_VOFF, S_KOFF))
    A("s_mov_b32 s%d, 0" % S_WOFF)
    A("v_mov_b32 v5, 0x3f803f80")
    A("s_lshl_b32 s56, s%d, 10" % S_W)
    A("v_add_u32 v6, s56, v%d" % V_SELA)
    for k in range(3):
        A("s_add_u32 s57, s%d, %d" % (S_W, 4 * k))
        A("v_cmp_eq_u32 vcc, s57, v1")
        A("s_nop 1")
        for r in range(4):
            A("v_cndmask_b32 v%d, 0, v5, vcc" % (8 + 4 * k + r))
        if k == 2:
            A("s_cmp_lg_u32 s%d, 0" % S_W)
            A("s_cbranch_scc1 K1_selskip")
        A("ds_write_b128 v6, %s offset:%d" % (vr(8 + 4 * k), 4096 * k))
    A.label("K1_selskip")
    A("s_waitcnt lgkmcnt(0)")
    A("s_cmp_eq_u32 s%d, 0" % S_BLK)
    for i in range(10):
        A("s_cselect_b32 s%d, s%d, s%d" % (64 + i, 64 + i, 74 + i))
    A("s_mul_i32 s56, s%d, 147456" % S_B)
    make_srd(A, S_X, 64, 65, "s56", "147456")
    A("s_lshl_b32 s56, s%d, 8" % S_H)
    A("s_lshl_b32 s57, s%d, 7" % S_HALF)
    A("s_add_u32 s56, s56, s57")
    A("s_sub_u32 s57, 4194304, s56")
    make_srd(A, S_WQ, 70, 71, "s56", "s57")
    A("s_lshl_b32 s56, s%d, 5" % S_B)
    A("s_add_u32 s56, s56, s%d" % S_H)
    A("s_lshl_b32 s57, s56, 17")
    make_srd(A, S_K, 66, 67, "s57", "131072")
    make_srd(A, S_V, 68, 69, "s57", "131072")
    A("s_lshl_b32 s57, s%d, 19" % S_HG)
    A("s_lshl_b32 s58, s%d, 8" % S_W)
    A("s_add_u32 s57, s57, s58")
    A("s_sub_u32 s58, 524288, s58")
    make_srd(A, S_WO, 72, 73, "s57", "s58")
    if OPT['v1only']:
        A("s_mov_b32 s56, s%d" % S_HG)
    else:
        A("s_lshr_b32 s56, s%d, 1" % S_HG)
        A("s_lshl_b32 s57, s56, 1")
        A("s_add_u32 s57, s57, 4")
        A("s_cmp_eq_u32 s%d, 0" % S_TYPE)
        A("s_cselect_b32 s56, s56, s57")
    A("s_lshl_b32 s57, s%d, 4" % S_BLK)
    A("s_add_u32 s57, s57, s%d" % S_B)
    A("s_mul_i32 s57, s57, %d" % NSLOT)
    A("s_add_u32 s57, s57, s56")
    A("s_lshl_b32 s57, s57, 2")
    A("s_add_u32 s57, s57, s%d" % S_W)
    A("s_mul_i32 s57, s57, 36864")
    make_srd(A, S_P, 84, 85, "s57", "36864")
    if OPT['prof']:
        A("s_mov_b32 s%d, s98" % STAMP_REGS[0])
    if not OPT['v1only']:
        A("s_cmp_lg_u32 s%d, 0" % S_TYPE)
        A("s_cbranch_scc1 K1_v2_entry")
    base_vm = list(A.vms[0])
    if OPT['rot']:
        A("s_add_u32 s56, s%d, s%d" % (S_HG, S_B))
        A("s_and_b32 s56, s56, 3")
        for j in range(4):
            A("s_add_u32 s57, s56, %d" % j)
            A("s_and_b32 s57, s57, 3")
            A("s_lshl_b32 s57, s57, 8")
            A("s_add_u32 s%d, s%d, s57" % (S_XR + j, S_XG))
        A("s_lshl_b32 s56, s56, 20")
        A("v_add_u32 v%d, s56, v%d" % (V_W, V_W))

    def wq_loads(s):
        return ["W%d|buffer_load_dwordx4 %s, v%d, %s, s%d offen" % (s, vr(RB1[s % 3] + 4 * j), V_W, srd(S_WQ), S_J + j) for j in range(8)] + \
               ["v_add_u32 v%d, 0x40000, v%d" % (V_W, V_W)] + (["v_and_b32 v%d, 0x3fffff, v%d" % (V_W, V_W)] if OPT['rot'] else [])
    A.many(x_dma(0, V_XD) + wq_loads(0) + wq_loads(1) + wq_loads(2) + x_dma(1, V_XD) + x_dma(2, V_XD) + x_dma(3, V_XD))
    A("WAITVM W0")
    for i in range(3):
        A.many(perms(RB1[0], VF, i))
    A("s_barrier")
    stamp(A, 1)
    A.many(xq_reads(lambda t: vr(XB1[0] + 4 * t), 0))
    def qhook(s, sl, when):
        if when == 'pre':
            if OPT['onebar']:
                if s == 3:
                    sl[0].append("WAITVM XS3")
                    sl[0].append("s_barrier")
            elif s in (3, 7, 11):
                sl[0].append("WAITVM XS%d" % ((s + 1) // 4))
                sl[0].append("s_barrier")
            if s == 15:
                sl[0].append("s_barrier")
            return
        if s == 15:
            spread(sl, v_loads(), 1, 8)
            sl[72] += k_loads(KB[1])
            for i in range(OPT['npf2']):
                sl[72] += pf_piece(max(OPT['npf'], 6) + i)
        if s == 13:
            spread(sl, k_loads(KB[0], "K0"), 9, 17)
        for i in range(pf_steps.count(s)):
            spread(sl, pf_piece(pfi[0]), 45 + 5 * i, 49 + 5 * i); pfi[0] += 1
    npf = OPT['npf']
    pf_steps = [OPT['pfs0'] + (i * (OPT['pfs1'] - OPT['pfs0'] + 1)) // npf for i in range(npf)] if npf else []
    pfi = [0]
    def qfinish(t):
        return conv_tile(t, [168, 180, 192, 0, 12], ('s', S_C),
                         lambda t, s, r: ["ds_write_b128 v%d, %s offset:%d" % (V_Q, vr(r), (t * 4 + s) * 1024)])
    proj_loop(A, 16, RB1, XB1, lambda buf, ks: xq_reads(lambda t: vr(buf + 4 * t), ks), wq_loads, "W", qhook, qfinish)
    pre_attention(A)
    A("s_mov_b32 s%d, 7" % S_CNT)

    A.label("K1_att")
    A.vms = [["K0"] * 8 + ["V"] * 8 + ["K"] * 8 + ["PF"] * (4 * OPT['npf2'] if OPT['v1only'] else 0)]
    def q_read(t, s):
        return "ds_read_b128 %s, v%d offset:%d" % (vr(QB + 4 * s), V_Q, (t * 4 + s) * 1024)
    def a_mfmas(kb, sb, t, first):
        out = []
        for s in range(4):
            for kt in range(2):
                c = ("0" if first else vr(NM + 4 * t)) if s == 0 else vr(sb + 4 * kt)
                out.append("%s %s, %s, %s, %s" % (MFMA, vr(sb + 4 * kt), vr(kb + 4 * (kt * 4 + s)), vr(QB + 4 * s), c))
        return out
    def c_mfmas(t, pb, first):
        out = ["%s %s, %s, %s, %s" % (MFMA, vr(LS), vr(SEL), vr(pb), vr(LS))]
        for e in range(8):
            c = "0" if first else acc(t, e)
            out.append("%s %s, %s, %s, %s" % (MFMA, acc(t, e), vr(VF + 4 * e), vr(pb), c))
        return out
    stamp(A, 2, True)
    A.many([q_read(0, s) for s in range(4)])
    A("WAITVM K0 0")
    A.many(a_mfmas(KB[0], SB[0], 0, True))
    A.many([q_read(1, s) for s in range(4)])
    A("WAITVM V")
    for i in range(4):
        A.many(perms(VR, VF, i))
    if OPT['v1early']:
        A.many(v_loads())

    def epi_bperm(t):
        return "ds_bpermute_b32 v%d, v%d, v%d offset:%d" % (NM + 4 * t + 2, V_X, LS + (t & 3), 64 * (t >> 2))
    def epi_rcp(t):
        return "v_rcp_f32 v%d, v%d" % (NM + 4 * t, NM + 4 * t + 2)
    def epi_conv(t):
        return conv_tile(t, [32, 44], ('p', NM + 4 * t),
                         lambda t, s, r: ["ds_write_b128 v%d, %s offset:%d" % (V_Q, vr(r), (t * 4 + s) * 1024)])

    def iteration(A, bpar, t, kind, site):
        par = (bpar + t) & 1
        has_a = not (kind == 'last' and t == 8) and kind != 'drain'
        has_c = not (kind == 'first' and t == 0)
        has_b = kind != 'drain'
        amf = a_mfmas(KB[bpar] if t < 8 else KB[bpar ^ 1], SB[par ^ 1], (t + 1) % 9, kind == 'first' and t < 8) if has_a else []
        cmf = c_mfmas((t - 1) % 9, PB[par ^ 1], kind == 'first') if has_c else []
        mf = amf + cmf
        nm = len(mf); na = len(amf)
        sl = [[] for _ in range(nm + 1)]
        sl[0].append("WAITVM K 0" if (t == 8 and has_a) else "s_waitcnt lgkmcnt(0)")
        S = SB[par]; P = PB[par]; nmr = NM + 4 * t
        def G(x):
            return min(nm, (x * nm) // 17)
        if has_b:
            ex = ["v_exp_f32 v%d, v%d" % (S + i, S + i) for i in range(8)]
            cv = ["v_cvt_pk_bf16_f32 v%d, v%d, v%d" % (P + p, S + 2 * p, S + 2 * p + 1) for p in range(4)]
            if kind == 'first':
                pre = max8(V_T0, S) + xlane_reduce(V_T0, V_T1, "v_max_f32")
                pre += ["v_sub_f32 v%d, 0, v%d" % (nmr + r, V_T0) for r in range(4)]
                sb = ["v_sub_f32 v%d, v%d, v%d" % (S + i, S + i, V_T0) for i in range(8)]
                spread(sl, pre, G(0), G(5))
                spread(sl, sb, G(6), G(8))
                spread(sl, ex, G(9), G(15))
                spread(sl, ["s_nop 0"] + cv, G(16), G(17))
            else:
                spread(sl, max8(V_T0, S) + ["v_cmp_lt_f32 vcc, s%d, v%d" % (S_THR, V_T0)], G(0), G(2))
                sl[G(4)].append("s_cbranch_vccnz K1_rare_%s" % site)
                sl[G(4)].append("K1_back_%s:" % site)
                rare_sites.append((site, t, S))
                spread(sl, ex, G(4), G(12))
                spread(sl, cv, G(13), G(16))
        if has_a and (kind in ('first', 'mid') or (kind == 'last' and t <= 6)):
            for s in range(4):
                sl[2 * s + 2].append(q_read((t + 2) % 9, s))
        if has_b:
            sl[min(nm, na + 2)].append("ds_read_b128 %s, v%d offset:%d" % (vr(SEL), V_SELA, t * 1024))
        if t == 8 and kind in ('first', 'mid') and not OPT['kt7']:
            spread(sl, k_loads(KB[bpar]), G(2), G(11))
        if t == 8 and kind in ('first', 'mid') and OPT['kt7']:
            sl[1].append("RETAG KN K")
        if kind != 'first' and kind != 'drain':
            if t == 0:
                sl[na + 2].append("WAITVM V")
                spread(sl, perms(VR, VF, 0), na + 3, na + 5)
                spread(sl, perms(VR, VF, 1), na + 5, na + 7)
                spread(sl, perms(VR, VF, 2), na + 7, na + 9)
            if t == 1:
                spread(sl, perms(VR, VF, 3), 1, 4)
        if t == 2 and kind in ('first', 'mid') and not (OPT['v1early'] and kind == 'first') and not OPT['vt1']:
            spread(sl, v_loads(), G(2), G(11))
        if t == 1 and kind == 'mid' and OPT['vt1']:
            spread(sl, v_loads(), G(6), G(15))
        if t == 7 and kind in ('first', 'mid') and OPT['kt7']:
            spread(sl, k_loads(KB[bpar], "KN"), na + 1, nm)
        if OPT['apf'] and t == 4 and kind in ('first', 'mid'):
            pf = []
            for d in range(OPT['apf']):
                pf += ["s_add_u32 s56, s%d, %d" % (S_KOFF, 8192 * (OPT['apfd'] + d)), "s_and_b32 s56, s56, 0x1ffff",
                       "PF|buffer_load_dword v%d, v%d, %s, s56 offen" % (V_XD, V_W, srd(S_K)),
                       "s_add_u32 s56, s%d, %d" % (S_VOFF, 8192 * (OPT['apfd'] + d)), "s_and_b32 s56, s56, 0x1ffff",
                       "PF|buffer_load_dword v%d, v%d, %s, s56 offen" % (V_XD, V_W, srd(S_V))]
            spread(sl, pf, G(2), G(11))
        if kind == 'last' and t == 1:
            spread(sl, (calc_wo2 if OPT['o2'] else calc_wo)(V_W, V_XD, V_T1), G(6), G(12))
        if kind == 'last' and t == 2:
            spread(sl, (wo2_loads(0) + wo2_loads(1)) if OPT['o2'] else wo_loads(0), G(2), G(11))
        if not OPT['epi']:
            if kind == 'last' and t == 4:
                spread(sl, wo_loads(1), G(2), G(11))
            if kind == 'last' and t == 8:
                spread(sl, wo_loads(2), G(2), G(8))
        elif kind in ('last', 'drain'):
            tt = t if kind == 'last' else 9
            if tt == 0:
                sl[1] += ["v_and_b32 v%d, 0xf0, v%d" % (V_X, V_L16), "v_lshrrev_b32 v%d, 2, v%d" % (V_X, V_X)]
            if tt == 8:
                spread(sl, (wo2_loads(2) + wo2_loads(3)) if OPT['o2'] else wo_loads(1), G(2), G(8))
            if tt >= 1:
                sl[nm].append(epi_bperm(tt - 1))
            if tt >= 2:
                sl[0].append(epi_rcp(tt - 2))
                spread(sl, epi_conv(tt - 2), 2, nm)
        if OPT.get('nocomp') and kind == 'mid':
            keep = OPT['nocomp']
            mf = [m if (keep == 2) else "s_nop 0" for m in mf]
            sl = [[x for x in g if x.startswith(("WAITVM", "K|", "V|", "s_add", "s_and", "K1_back", "s_cbranch"))] for g in sl]
        weave(A, mf, sl)

    for t in range(9):
        iteration(A, 0, t, 'first', None)
    A.label("K1_aloop")
    w0 = len(A.waits)
    for t in range(9):
        iteration(A, 1, t, 'mid', "o%d" % t)
    for t in range(9):
        iteration(A, 0, t, 'mid', "e%d" % t)
    w1 = len(A.waits)
    B = Asm(); B.vms = [list(A.vms[0])]; saved = list(rare_sites)
    for t in range(9):
        iteration(B, 1, t, 'mid', "o%d" % t)
    for t in range(9):
        iteration(B, 0, t, 'mid', "e%d" % t)
    assert B.waits == A.waits[w0:w1], (B.waits, A.waits[w0:w1])
    del rare_sites[len(saved):]
    A("s_sub_u32 s%d, s%d, 1" % (S_CNT, S_CNT))
    A("s_cmp_lg_u32 s%d, 0" % S_CNT)
    A("s_cbranch_scc1 K1_aloop")
    A.vms[0].append("V")
    for t in range(9):
        iteration(A, 1, t, 'last', "l%d" % t)
    iteration(A, 0, 0, 'drain', None)
    stamp(A, 3, True)
    if OPT['epi']:
        LB = 144
        att_vm = list(A.vms[0])
        A("s_waitcnt lgkmcnt(0)")
        A(epi_rcp(8))
        A("s_nop 0")
        A.many(epi_conv(8))
        if not OPT['o2']:
            A.many(wo_loads(2))
    else:
        LB = 144
        A("v_and_b32 v%d, 0xf0, v%d" % (V_T0, V_L16))
        A("v_lshrrev_b32 v%d, 2, v%d" % (V_T0, V_T0))
        A("s_nop 4")
        for t in range(9):
            A("ds_bpermute_b32 v%d, v%d, v%d offset:%d" % (LB + t, V_T0, LS + (t & 3), 64 * (t >> 2)))
        att_vm = list(A.vms[0])
        if not OPT['v1only']:
            A("s_cmp_lg_u32 s%d, 0" % S_TYPE)
            A("s_cbranch_scc1 K1_v2_combine")

        RL = 200
        A("s_waitcnt lgkmcnt(0)")
        for t in range(9):
            A("v_rcp_f32 v%d, v%d" % (RL + t, LB + t))
        for t in range(9):
            A.many(conv_tile(t, [128, 156, 168, 180], ('v', RL + t),
                             lambda t, s, r: ["ds_write_b128 v%d, %s offset:%d" % (V_Q, vr(r), (s * 9 + t) * 1024)]))
    A("v_mov_b32 v%d, v%d" % (V_XO, V_L16))
    if not OPT['o2']:
        A("WAITVM O0")
        for i in range(3):
            A.many(perms(RB2[0], VF, i))
    A("s_waitcnt lgkmcnt(0)")
    A("s_barrier")
    stamp(A, 4)
    def xo_reads1(buf, ks):
        if OPT['epi']:
            return ["ds_read_b128 %s, v%d offset:%d" % (vr(buf + 4 * t), V_XO, t * 4096 + (ks & 3) * 1024) for t in range(9)] + \
                   (["v_add_u32 v%d, 36864, v%d" % (V_XO, V_XO)] if (ks & 3) == 3 else [])
        return ["ds_read_b128 %s, v%d offset:%d" % (vr(buf + 4 * t), V_XO, t * 1024) for t in range(9)] + \
               ["v_add_u32 v%d, 9216, v%d" % (V_XO, V_XO)]
    if OPT['o2']:
        oproj2(A)
    else:
        A.many(xo_reads1(XB2[0], 0))
        proj_loop(A, 16, RB2, XB2, xo_reads1, wo_loads, "O", lambda s, sl, when: None, ofinish)
    if OPT['prof']:
        A("s_waitcnt vmcnt(0)")
    stamp(A, 5)
    A.label("K1_end")
    stamp_flush(A, 16)
    A.label("K1_done")
    A("s_endpgm")

    for site, t, S in rare_sites:
        nmr = NM + 4 * t
        A.label("K1_rare_%s" % site)
        A.many(xlane_reduce(V_T0, V_T1, "v_max_f32"))
        A("v_max_f32 v%d, 0, v%d" % (V_T0, V_T0))
        A("v_sub_f32 v%d, 0, v%d" % (V_T1, V_T0))
        A("v_exp_f32 v%d, v%d" % (V_T1, V_T1))
        for r in range(4):
            A("v_sub_f32 v%d, v%d, v%d" % (nmr + r, nmr + r, V_T0))
        for i in range(8):
            A("v_sub_f32 v%d, v%d, v%d" % (S + i, S + i, V_T0))
        A("s_mov_b32 s56, 0x%x" % ((0xffff << (16 * (t >> 2))) & 0xffffffff))
        A("s_mov_b32 s57, 0x%x" % ((0xffff << (16 * (t >> 2))) >> 32))
        A("v_cndmask_b32 v%d, 1.0, v%d, s[56:57]" % (V_T0, V_T1))
        A("v_mul_f32 v%d, v%d, v%d" % (LS + (t & 3), LS + (t & 3), V_T0))
        for e in range(8):
            for r in range(4):
                reg = acc_reg(t, e, r)
                if reg[0] == 'a':
                    A("v_accvgpr_read_b32 v%d, %s" % (V_T0, reg))
                    A("v_mul_f32 v%d, v%d, v%d" % (V_T0, V_T0, V_T1))
                    A("v_accvgpr_write_b32 %s, v%d" % (reg, V_T0))
                else:
                    A("v_mul_f32 %s, %s, v%d" % (reg, reg, V_T1))
        A("s_nop 1")
        A("s_branch K1_back_%s" % site)

def gen_k2(A):
    A.raw(".globl %s" % K2)
    A.raw(".p2align 8")
    A.raw(".type %s,@function" % K2)
    A.label(K2)
    A("s_cmp_ge_u32 s2, %d" % (0 if OPT.get('k2empty') else 1152))
    A("s_cbranch_scc1 K2_done")
    A("s_load_dwordx2 s[64:65], s[0:1], 80")
    A("s_load_dwordx2 s[66:67], s[0:1], 96")
    if OPT['map2']:
        A("s_lshr_b32 s20, s2, 3")
        A("s_mul_hi_u32 s4, s20, 0x71c71c8")
        A("s_mul_i32 s5, s4, 36")
        A("s_sub_u32 s5, s20, s5")
        A("s_and_b32 s21, s2, 1")
        A("s_lshl_b32 s21, s21, 4")
        A("s_add_u32 s4, s4, s21")
        A("s_lshr_b32 s21, s2, 1")
        A("s_and_b32 s21, s21, 3")
        A("s_lshl_b32 s21, s21, 2")
        A("s_add_u32 s4, s4, s21")
    else:
        A("s_mul_hi_u32 s4, s2, 0x71c71c8")
        A("s_mul_i32 s5, s4, 36")
        A("s_sub_u32 s5, s2, s5")
    A("v_lshrrev_b32 v1, 6, v0")
    A("v_and_b32 v2, 63, v0")
    A("s_nop 0")
    A("v_readfirstlane_b32 s6, v1")
    A("s_lshl_b32 s5, s5, 2")
    A("s_add_u32 s5, s5, s6")
    A("s_mul_hi_u32 s7, s5, 0x1c71c71d")
    A("s_mul_i32 s12, s7, 9")
    A("s_sub_u32 s12, s5, s12")
    A("v_lshlrev_b32 v3, 4, v2")
    A("s_waitcnt lgkmcnt(0)")
    A("s_mul_i32 s13, s4, %d" % (NSLOT * PART_BYTES))
    A("s_lshl_b32 s14, s5, 10")
    A("s_add_u32 s13, s13, s14")
    A("s_add_u32 s8, s66, s13")
    A("s_addc_u32 s9, s67, 0")
    A("s_mov_b32 s10, %d" % ((NSLOT - 1) * PART_BYTES + 1024))
    A("s_mov_b32 s11, 0x00020000")
    for h in range(NSLOT):
        A("s_mov_b32 s15, %d" % (h * PART_BYTES))
        A("buffer_load_dwordx4 %s, v3, s[8:11], s15 offen%s" % (vr(8 + 4 * h), OPT['rdf']))
    A("s_and_b32 s13, s4, 15")
    A("s_lshr_b32 s14, s4, 4")
    A("s_mul_i32 s13, s13, 144")
    A("s_lshl_b32 s12, s12, 4")
    A("s_add_u32 s13, s13, s12")
    A("s_lshl_b32 s13, s13, 11")
    A("s_lshl_b32 s14, s14, 10")
    A("s_add_u32 s13, s13, s14")
    if OPT['o2']:
        A("s_lshr_b32 s14, s7, 1")
        A("s_lshl_b32 s14, s14, 7")
        A("s_add_u32 s13, s13, s14")
        A("s_and_b32 s14, s7, 1")
        A("s_lshl_b32 s14, s14, 4")
        A("s_add_u32 s13, s13, s14")
    else:
        A("s_lshl_b32 s14, s7, 6")
        A("s_add_u32 s13, s13, s14")
    A("v_and_b32 v4, 15, v2")
    A("v_lshrrev_b32 v5, 4, v2")
    A("v_lshlrev_b32 v4, 11, v4")
    A("v_lshl_add_u32 v4, v5, %d, v4" % (5 if OPT['o2'] else 4))
    A("s_mov_b32 s16, s64")
    A("s_mov_b32 s17, s65")
    A("s_mov_b32 s18, %d" % (16 * 144 * 1024 * 2))
    A("s_mov_b32 s19, 0x00020000")
    R = 8 + 4 * NSLOT
    for h in range(NSLOT):
        A("s_waitcnt vmcnt(%d)" % (NSLOT - 1 - h))
        for p in range(4):
            src = 8 + 4 * h + p
            if h == 0:
                A("v_lshlrev_b32 v%d, 16, v%d" % (R + 2 * p, src))
                A("v_and_b32 v%d, 0xffff0000, v%d" % (R + 1 + 2 * p, src))
            else:
                A("v_lshlrev_b32 v%d, 16, v%d" % (R + 8, src))
                A("v_and_b32 v%d, 0xffff0000, v%d" % (R + 9, src))
                A("v_add_f32 v%d, v%d, v%d" % (R + 2 * p, R + 2 * p, R + 8))
                A("v_add_f32 v%d, v%d, v%d" % (R + 1 + 2 * p, R + 1 + 2 * p, R + 9))
    for p in range(4):
        A("v_cvt_pk_bf16_f32 v%d, v%d, v%d" % (R + 12 + p, R + 2 * p, R + 1 + 2 * p))
    A("buffer_store_dwordx4 %s, v4, s[16:19], s13 offen" % vr(R + 12))
    A.label("K2_done")
    A("s_endpgm")
    return R + 16

def descriptor(A, name, vgpr, accum):
    A.raw(".amdhsa_kernel %s" % name)
    A.raw("  .amdhsa_next_free_vgpr %d" % vgpr)
    A.raw("  .amdhsa_next_free_sgpr 102")
    A.raw("  .amdhsa_accum_offset %d" % accum)
    A.raw("  .amdhsa_group_segment_fixed_size 0")
    A.raw("  .amdhsa_kernarg_size 104")
    A.raw("  .amdhsa_user_sgpr_count 2")
    A.raw("  .amdhsa_user_sgpr_kernarg_segment_ptr 1")
    A.raw("  .amdhsa_system_sgpr_workgroup_id_x 1")
    A.raw(".end_amdhsa_kernel")

def main(path):
    A = Asm()
    hdr = open("cdna_kernels/%s.s.ref" % NAME).read().splitlines()
    for ln in hdr:
        if ln.startswith("; @launch"):
            break
        if ln.startswith("; Override") or ln.startswith("; grid=ceil"):
            continue
        A.raw(ln)
    A.raw("; @launch kernel=%s grid=(256,1,1) block=(256,1,1) lds=%d" % (K1, LDS_BYTES))
    A.raw("; @launch kernel=%s grid=(1152,1,1) block=(256,1,1) lds=0" % K2)
    A.raw('.amdgcn_target "amdgcn-amd-amdhsa--gfx950"')
    A.raw(".text")
    gen_k1(A)
    nv = gen_k2(A)
    A.raw('.section .rodata,"a"')
    A.raw(".p2align 6")
    descriptor(A, K1, 512, 256)
    A.raw(".p2align 6")
    descriptor(A, K2, nv, (nv + 3) // 4 * 4)
    open(path, "w").write(A.text())

if __name__ == "__main__":
    path = "cdna_kernels/%s.s" % NAME
    for a in sys.argv[1:]:
        if a.startswith("--"):
            k = a[2:]
            if "=" in k:
                k, v = k.split("="); OPT[k] = int(v) if v.isdigit() else v
            else:
                OPT[k] = True
        else:
            path = a
    if OPT['v1only']:
        OPT['force'] = 0; NSLOT = 8; OPT['cpf'] = min(OPT['cpf'], 2)
    if OPT['rdf']: OPT['rdf'] = " " + OPT['rdf'].replace("+", " ")
    if OPT['stf']: OPT['stf'] = " " + OPT['stf'].replace("+", " ")
    if OPT['kvf']: OPT['kvf'] = " " + OPT['kvf'].replace("+", " ")
    main(path)
```

```python
import sys, struct

NAME = "concat_heads__gqa_block_cached__gqa_block_cached__near_ridge"
K1 = NAME + "_kernel"
K2 = "reduce_kernel"

SCALE = 0.08838834764831845 * 1.4426950408889634
THR = 16.0
PART_BYTES = 147456
NSLOT = 12
SEL_OFF = 147456
ML_OFF = SEL_OFF + 9 * 1024
LDS_BYTES = ML_OFF + 4 * 1280

OPT = dict(tlb=0, nopk=0, o2=0, onebar=1, epi=1, rdf='nt', v1early=1, vt1=1, kt7=1, rot=0, stf='sc1', map2=1, v1only=1, npf=0, pfs0=2, pfs1=11, npf2=0, apf=0, apfd=0, kvf='nt', prof=False, noadv=False, cpf=3, tmask=1, tval=1)

def f32bits(x):
    return struct.unpack("<I", struct.pack("<f", x))[0]

class Asm:
    def __init__(self):
        self.lines = []
        self.vms = [[]]
        self.waits = []
    def __call__(self, s):
        if s.endswith(":"):
            self.lines.append(s); return
        if s.startswith("RETAG"):
            _, a, b = s.split()
            self.vms = [[b if t == a else t for t in vm] for vm in self.vms]
            return
        if s.startswith("WAITVM"):
            parts = s.split()
            tag = parts[1]
            n = 63
            for vm in self.vms:
                assert tag in vm, tag
                idx = max(i for i, t in enumerate(vm) if t == tag)
                n = min(n, len(vm) - 1 - idx)
            self.waits.append(n)
            s = "s_waitcnt vmcnt(%d)" % n
            if len(parts) > 2:
                s += " lgkmcnt(%s)" % parts[2]
            self.lines.append("    " + s); return
        tag = None
        if "|" in s:
            tag, s = s.split("|", 1)
        elif s.startswith("buffer_") or s.startswith("global_"):
            tag = "-"
        if tag is not None and not tag.startswith("?"):
            for i, vm in enumerate(self.vms):
                if getattr(self, "skipN", False) and tag.startswith("NO") and i > 0:
                    continue
                vm.append(tag)
        self.lines.append("    " + s)
    def many(self, l):
        for s in l: self(s)
    def label(self, l):
        self.lines.append(l + ":")
    def raw(self, s):
        self.lines.append(s)
    def text(self):
        return "\n".join(self.lines) + "\n"

def vr(b, n=4):
    return "v[%d:%d]" % (b, b + n - 1)
def ar(b, n=4):
    return "a[%d:%d]" % (b, b + n - 1)

def spread(slots, instrs, g0, g1):
    n = len(instrs); m = g1 - g0 + 1
    for i, ins in enumerate(instrs):
        slots[g0 + (i * m) // n].append(ins)

def weave(A, mfmas, slots):
    for i, m in enumerate(mfmas):
        for s in slots[i]: A(s)
        A(m)
    for s in slots[len(mfmas)]: A(s)

MFMA = "v_mfma_f32_16x16x32_bf16"

KB = [32, 0]
VF = 64
VR = 96
QB = 128
SB = [144, 152]
PB = [160, 164]
NM = 168
LS, SEL = 204, 208
V_OFFK0, V_OFFK1, V_OFFV0, V_OFFV1, V_Q, V_T0, V_T1, V_L16, V_W, V_X, V_XD, V_SELA = range(212, 224)
ACCV = 224
RB1, XB1 = [0, 32, 168], [96, 132]
RB2, XB2 = [32, 96, 0], [128, 164]
RB3, XA3 = [128, 144, 160, 176], [128, 164]
V_XD2, V_XO = 210, 211

def acc(t, e):
    u = t * 8 + e
    return ar(4 * u) if u < 64 else vr(ACCV + 4 * (u - 64))
def acc_reg(t, e, r):
    u = t * 8 + e
    return "a%d" % (4 * u + r) if u < 64 else "v%d" % (ACCV + 4 * (u - 64) + r)
def acc3(t, e):
    return ar(16 * t + 4 * e) if t < 8 else vr(ACCV + 4 * e)
def acc3_reg(t, e, r):
    return "a%d" % (16 * t + 4 * e + r) if t < 8 else "v%d" % (ACCV + 4 * e + r)

S_X, S_WQ, S_K, S_V, S_WO, S_P = 8, 12, 16, 20, 24, 28
S_HG, S_WOFF, S_TYPE, S_RND = 32, 33, 34, 35
S_J = 36
S_PLO, S_PHI, S_CNT, S_KOFF, S_VOFF, S_HALF, S_THR = 44, 45, 46, 47, 48, 49, 50
S_BLK, S_B, S_H, S_W = 51, 52, 53, 54
S_XL, S_XG, S_C = 4, 5, 6

def srd(s):
    return "s[%d:%d]" % (s, s + 3)

def perms(raw, frag, i, w=4):
    out = []
    for p in range(4):
        a = raw + w * (2 * p) + i
        b = raw + w * (2 * p + 1) + i
        out.append("v_perm_b32 v%d, v%d, v%d, s%d" % (frag + 4 * (2 * i) + p, b, a, S_PLO))
        out.append("v_perm_b32 v%d, v%d, v%d, s%d" % (frag + 4 * (2 * i + 1) + p, b, a, S_PHI))
    return out

def adv(s, step=8192):
    if OPT['noadv']: return []
    return ["s_add_u32 s%d, s%d, %d" % (s, s, step), "s_and_b32 s%d, s%d, 0x1ffff" % (s, s)]

def k_loads(buf, tag="K"):
    out = []
    for kt in range(2):
        for s in range(4):
            out.append("%s|buffer_load_dwordx4 %s, v%d, %s, s%d offen offset:%d" % (
                tag, vr(buf + 4 * (kt * 4 + s)), V_OFFK0 + kt, srd(S_K), S_KOFF, 128 * (s >> 1) + 16 * (s & 1)) + OPT['kvf'])
    return out + adv(S_KOFF)

def v_loads(tag="V"):
    out = []
    for j in range(8):
        out.append("%s|buffer_load_dwordx4 %s, v%d, %s, s%d offen offset:%d" % (
            tag, vr(VR + 4 * j), V_OFFV0 + (j >> 2), srd(S_V), S_VOFF, (j & 3) * 256) + OPT['kvf'])
    return out + adv(S_VOFF)

def pf_piece(i):
    j = i >> 1
    out = ["s_mov_b32 s55, %d" % ((j >> 1) * 8192 + (i & 1) * 4096)]
    for q in range(4):
        out.append("PF|buffer_load_dwordx4 %s, v%d, %s, s55 offen offset:%d" % (vr(SEL), V_L16, srd(S_V if j & 1 else S_K), q * 1024))
    return out

def xlane_reduce(reg, tmp, op):
    return ["v_mov_b32 v%d, v%d" % (tmp, reg), "s_nop 1",
            "v_permlane16_swap_b32 v%d, v%d" % (tmp, reg), "s_nop 1",
            "%s v%d, v%d, v%d" % (op, reg, reg, tmp),
            "v_mov_b32 v%d, v%d" % (tmp, reg), "s_nop 1",
            "v_permlane32_swap_b32 v%d, v%d" % (tmp, reg), "s_nop 1",
            "%s v%d, v%d, v%d" % (op, reg, reg, tmp)]

def max8(dst, S):
    return ["v_max3_f32 v%d, v%d, v%d, v%d" % (dst, S, S + 1, S + 2),
            "v_max3_f32 v%d, v%d, v%d, v%d" % (dst, dst, S + 3, S + 4),
            "v_max3_f32 v%d, v%d, v%d, v%d" % (dst, dst, S + 5, S + 6),
            "v_max_f32 v%d, v%d, v%d" % (dst, dst, S + 7)]

def calc_xd(dst, t0):
    return ["v_bfe_u32 v%d, v%d, 6, 3" % (dst, V_L16),
            "v_lshlrev_b32 v%d, 10, v%d" % (dst, dst),
            "v_lshrrev_b32 v%d, 9, v%d" % (t0, V_L16),
            "v_lshl_add_u32 v%d, v%d, 6, v%d" % (dst, t0, dst),
            "v_lshrrev_b32 v%d, 3, v%d" % (t0, V_L16),
            "v_xor_b32 v%d, v%d, v%d" % (t0, t0, V_L16),
            "v_and_b32 v%d, 32, v%d" % (t0, t0),
            "v_add_u32 v%d, v%d, v%d" % (dst, t0, dst),
            "v_and_b32 v%d, 16, v%d" % (t0, V_L16),
            "v_add_u32 v%d, v%d, v%d" % (dst, t0, dst)]
def calc_wo(dst, dst2, t0):
    return ["v_bfe_u32 v%d, v%d, 4, 2" % (dst, V_L16),
            "v_lshlrev_b32 v%d, 6, v%d" % (dst, dst),
            "v_bfe_u32 v%d, v%d, 6, 2" % (t0, V_L16),
            "v_lshl_add_u32 v%d, v%d, 4, v%d" % (dst, t0, dst),
            "v_lshrrev_b32 v%d, 8, v%d" % (t0, V_L16),
            "v_lshl_add_u32 v%d, v%d, 13, v%d" % (dst, t0, dst),
            "v_add_u32 v%d, 0x1000, v%d" % (dst2, dst)]
def calc_w2(dst, t0):
    return ["v_bfe_u32 v%d, v%d, 4, 4" % (dst, V_L16),
            "v_lshlrev_b32 v%d, 3, v%d" % (dst, dst),
            "v_lshrrev_b32 v%d, 8, v%d" % (t0, V_L16),
            "v_lshl_add_u32 v%d, v%d, 16, v%d" % (dst, t0, dst),
            "v_add_u32 v%d, 0x200000, v%d" % (dst, dst)]

PROF_OFF = 64 << 20
STAMP_REGS = list(range(64, 84)) + list(range(86, 98))
def stamp(A, k, rnd=False):
    if not OPT['prof']:
        return
    A("s_memtime s[100:101]")
    A("s_waitcnt lgkmcnt(0)")
    if rnd:
        A("s_cmp_eq_u32 s%d, 0" % S_RND)
        A("s_cselect_b32 s%d, s100, s%d" % (STAMP_REGS[k], STAMP_REGS[k]))
        A("s_cselect_b32 s%d, s%d, s100" % (STAMP_REGS[k + 8], STAMP_REGS[k + 8]))
    else:
        A("s_mov_b32 s%d, s100" % STAMP_REGS[k])
def stamp_flush(A, n):
    if not OPT['prof']:
        return
    A("s_lshl_b32 s56, s2, 2")
    A("s_add_u32 s56, s56, s%d" % S_W)
    A("s_lshl_b32 s56, s56, 7")
    A("s_add_u32 s56, s56, %d" % PROF_OFF)
    A("s_add_u32 s60, s84, s56")
    A("s_addc_u32 s61, s85, 0")
    A("s_mov_b32 s62, 128")
    A("s_mov_b32 s63, 0x00020000")
    A("v_mov_b32 v1, 0")
    for k in range(n):
        A("v_mov_b32 v%d, s%d" % (2 + k, STAMP_REGS[k]))
        A("buffer_store_dword v%d, v1, s[60:63], 0 offen offset:%d" % (2 + k, 4 * k))

def make_srd(A, s, lo, hi, off, size):
    A("s_add_u32 s%d, s%d, %s" % (s, lo, off)); A("s_addc_u32 s%d, s%d, 0" % (s + 1, hi))
    A("s_mov_b32 s%d, %s" % (s + 2, size))
    A("s_mov_b32 s%d, 0x00020000" % (s + 3))

S_XR = 60
def x_dma(stage, areg, cond=""):
    out = []
    for i in range(9):
        out.append("s_add_u32 m0, s%d, %d" % (S_XL, stage * 36864 + i * 1024))
        if OPT['rot']:
            out.append("s_add_u32 s58, s%d, %d" % (S_XR + stage, i * 8192))
        else:
            out.append("s_add_u32 s58, s%d, %d" % (S_XG, i * 8192 + stage * 256))
        out.append("%sXS%d|buffer_load_dwordx4 v%d, %s, s58 offen lds" % (cond, stage, areg, srd(S_X)))
    return out

def xq_reads(dst, ks, wrap=False):
    out = ["ds_read_b128 %s, v%d offset:%d" % (dst(t), V_X, t * 2048 + (ks & 1) * 512) for t in range(9)]
    if ks & 1:
        out.append("v_add_u32 v%d, 0x%x, v%d" % (V_X, (18432 - 147456) & 0xffffffff if wrap else 18432, V_X))
    return out

def conv_tile(t, tmp, scale, sink, areg=acc_reg):
    out = []
    for s in range(4):
        b = tmp[(4 * t + s) % len(tmp)]
        inv = areg(t, 0, s)[0] == 'v'
        if not inv:
            for e in range(8):
                out.append("v_accvgpr_read_b32 v%d, %s" % (b + e, areg(t, e, s)))
            if scale and scale[0] == 's' and OPT['nopk']:
                for e in range(8):
                    out.append("v_mul_f32 v%d, s%d, v%d" % (b + e, scale[1], b + e))
            elif scale and scale[0] == 's':
                for p in range(4):
                    out.append("v_pk_mul_f32 %s, %s, s[%d:%d]" % (vr(b + 2 * p, 2), vr(b + 2 * p, 2), scale[1], scale[1] + 1))
            elif scale and scale[0] == 'p' and not OPT['nopk']:
                for p in range(4):
                    out.append("v_pk_mul_f32 %s, %s, %s op_sel_hi:[1,0]" % (vr(b + 2 * p, 2), vr(b + 2 * p, 2), vr(scale[1], 2)))
            elif scale:
                for e in range(8):
                    out.append("v_mul_f32 v%d, v%d, v%d" % (b + e, scale[1], b + e))
            src = [b + e for e in range(8)]
        elif scale:
            for e in range(8):
                out.append("v_mul_f32 v%d, %s%d, %s" % (b + e, 's' if scale[0] == 's' else 'v', scale[1], areg(t, e, s)))
            src = [b + e for e in range(8)]
        else:
            src = [int(areg(t, e, s)[1:]) for e in range(8)]
        for p in range(4):
            out.append("v_cvt_pk_bf16_f32 v%d, v%d, v%d" % (b + 8 + p, src[2 * p], src[2 * p + 1]))
        out += sink(t, s, b + 8)
    return out

def proj_loop(A, nsteps, RB, XB, xreads, wloads, wtag, hook, finish):
    L = nsteps - 1
    for s in range(nsteps):
        par = s & 1
        mf = []
        if s < L:
            for e in range(8):
                for t in range(9):
                    c = "0" if s == 0 else acc(t, e)
                    mf.append("%s %s, %s, %s, %s" % (MFMA, acc(t, e), vr(VF + 4 * e), vr(XB[par] + 4 * t), c))
        else:
            for t in range(9):
                for e in range(8):
                    mf.append("%s %s, %s, %s, %s" % (MFMA, acc(t, e), vr(VF + 4 * e), vr(XB[par] + 4 * t), acc(t, e)))
        sl = [[] for _ in range(73)]
        sl[0].append("s_waitcnt lgkmcnt(0)")
        spread(sl, perms(RB[s % 3], VF, 3), *((1, 8) if s < L else (0, 3)))
        hook(s, sl, 'pre')
        if s < L:
            spread(sl, xreads(XB[par ^ 1], s + 1), 1, 10)
        if s + 3 < nsteps:
            spread(sl, wloads(s + 3), 9, 17)
        if s < L:
            sl[18].append("WAITVM %s%d" % (wtag, s + 1))
            spread(sl, perms(RB[(s + 1) % 3], VF, 0), 19, 26)
            spread(sl, perms(RB[(s + 1) % 3], VF, 1), 37, 44)
            spread(sl, perms(RB[(s + 1) % 3], VF, 2), 55, 62)
        else:
            for t in range(8):
                spread(sl, finish(t), 8 * (t + 1) + 2, min(72, 8 * (t + 2) + 1))
            sl[72] += finish(8)
        hook(s, sl, 'post')
        weave(A, mf, sl)

def wo_loads(s):
    global RB2
    out = []
    for j in range(8):
        out.append("O%d|buffer_load_dwordx4 %s, v%d, %s, s%d offen offset:%d" % (
            s, vr(RB2[s % 3] + 4 * j), V_W if j < 4 else V_XD, srd(S_WO), S_WOFF, (j & 3) * 1024))
    return out + ["s_add_u32 s%d, s%d, 32768" % (S_WOFF, S_WOFF)]

RB4 = [96, 112, 0, 16]
S_PASS = S_RND
def wo2_loads(s, cond=""):
    out = []
    for j in range(8):
        out.append("%sO%d|buffer_load_dwordx2 %s, v%d, %s, s%d offen offset:%d" % (
            cond, s, vr(RB4[s & 3] + 2 * j, 2), V_W if j < 4 else V_XD, srd(S_WO), S_WOFF, (j & 3) * 1024))
    if (s & 15) == 15:
        return out + ["s_mov_b32 s%d, 128" % S_WOFF]
    return out + ["s_add_u32 s%d, s%d, 32768" % (S_WOFF, S_WOFF)]
def calc_wo2(dst, dst2, t0):
    return ["v_bfe_u32 v%d, v%d, 4, 4" % (dst, V_L16),
            "v_lshlrev_b32 v%d, 3, v%d" % (dst, dst),
            "v_lshrrev_b32 v%d, 8, v%d" % (t0, V_L16),
            "v_lshl_add_u32 v%d, v%d, 13, v%d" % (dst, t0, dst),
            "v_add_u32 v%d, 0x1000, v%d" % (dst2, dst)]

def oproj2(A):
    def xr(buf, ks):
        out = ["ds_read_b128 %s, v%d offset:%d" % (vr(buf + 4 * t), V_XO, t * 4096 + (ks & 3) * 1024) for t in range(9)]
        if ks == 15:
            out.append("v_mov_b32 v%d, v%d" % (V_XO, V_L16))
        elif (ks & 3) == 3:
            out.append("v_add_u32 v%d, 36864, v%d" % (V_XO, V_XO))
        return out
    def fin(t):
        out = []
        for sg in range(2):
            b = [32, 44, 80, 240][(2 * t + sg) & 3]
            regs = [(e, 2 * sg + r1) for r1 in range(2) for e in range(4)]
            if t < 8:
                for i, (e, r) in enumerate(regs):
                    out.append("v_accvgpr_read_b32 v%d, %s" % (b + i, acc3_reg(t, e, r)))
                src = [b + i for i in range(8)]
            else:
                src = [int(acc3_reg(t, e, r)[1:]) for (e, r) in regs]
            for p in range(4):
                out.append("v_cvt_pk_bf16_f32 v%d, v%d, v%d" % (b + 8 + p, src[2 * p], src[2 * p + 1]))
            out.append("s_add_u32 s56, s57, %d" % ((sg * 9 + t) * 1024))
            out.append("buffer_store_dwordx4 %s, v%d, %s, s56 offen%s" % (vr(b + 8), V_L16, srd(S_P), OPT['stf']))
        return out
    A("s_mov_b32 s%d, 0" % S_PASS)
    A("s_mov_b32 s57, 0")
    A.many(xr(XB2[0], 0))
    hist1 = list(A.vms[0])
    def body(A):
        for s in range(16):
            par = s & 1
            mf = []
            if s < 15:
                for e in range(4):
                    for t in range(9):
                        c = "0" if s == 0 else acc3(t, e)
                        mf.append("%s %s, %s, %s, %s" % (MFMA, acc3(t, e), vr(VF + 4 * e), vr(XB2[par] + 4 * t), c))
            else:
                for t in range(9):
                    for e in range(4):
                        mf.append("%s %s, %s, %s, %s" % (MFMA, acc3(t, e), vr(VF + 4 * e), vr(XB2[par] + 4 * t), acc3(t, e)))
            sl = [[] for _ in range(37)]
            if s == 0:
                sl[0] += ["WAITVM O0"] + perms(RB4[0], VF, 0, 2)
            sl[0].append("s_waitcnt lgkmcnt(0)")
            spread(sl, perms(RB4[s & 3], VF, 1, 2), *((1, 6) if s < 15 else (0, 0)))
            spread(sl, xr(XB2[par ^ 1], (s + 1) & 15), 1, 10)
            if s + 4 < 16:
                spread(sl, wo2_loads(s + 4), 7, 15)
            else:
                spread(sl, wo2_loads(s + 4 - 16, "N"), 7, 15)
            if s < 15:
                sl[18].append("WAITVM O%d" % (s + 1))
                spread(sl, perms(RB4[(s + 1) & 3], VF, 0, 2), 19, 26)
            else:
                for t in range(7):
                    spread(sl, fin(t), 4 * (t + 2) + 1, 4 * (t + 3))
                sl[36] += fin(7) + fin(8)
            weave(A, mf, sl)
    B = Asm(); B.vms = [list(hist1)]
    body(B)
    hist2 = [t[1:] if t.startswith("NO") else ("-" if t.startswith("O") else t) for t in B.vms[0]]
    class Dual(Asm):
        pass
    A.vms = [hist1, hist2]
    A.label("K1_opass")
    body(A)
    A("s_add_u32 s%d, s%d, 1" % (S_PASS, S_PASS))
    A("s_mov_b32 s57, 18432")
    A("s_cmp_lg_u32 s%d, 2" % S_PASS)
    A("s_cbranch_scc1 K1_opass")

def ofinish(t):
    return conv_tile(t, [96, 108, 0, 12, 128, 140], None,
                     lambda t, s, r: ["s_mov_b32 s56, %d" % ((s * 9 + t) * 1024),
                                      "buffer_store_dwordx4 %s, v%d, %s, s56 offen%s" % (vr(r), V_L16, srd(S_P), OPT['stf'])])

def pre_attention(A):
    for u in range(32):
        A("v_mov_b32 v%d, 0" % (ACCV + u))
    A("v_lshlrev_b32 v%d, 3, v%d" % (V_W, V_L16))
    A("s_waitcnt lgkmcnt(0)")
    for u in range(4):
        A("v_mov_b32 v%d, 0" % (LS + u))

def o2_off(hs, s, t):
    return hs * 36864 + ((s * 4 + t - 5) * 1024 if t >= 5 else 16384 + (s * 5 + t) * 1024)
def ex_off(h, k):
    head = 16 if h == 0 else 20
    base = 0 if h == 0 else 16384
    return base + k * 1024 if k < head else 73728 + base + (k - head) * 1024

def gen_k1(A):
    global RB2
    if OPT['epi']:
        RB2 = [96, 0, 32]
    rare_sites = []
    A.raw(".globl %s" % K1)
    A.raw(".p2align 8")
    A.raw(".type %s,@function" % K1)
    A.label(K1)
    A("s_cmp_ge_u32 s2, 256")
    A("s_cbranch_scc1 K1_done")
    A("s_load_dwordx4 s[64:67], s[0:1], 0")
    A("s_load_dwordx4 s[68:71], s[0:1], 16")
    A("s_load_dwordx2 s[72:73], s[0:1], 32")
    A("s_load_dwordx2 s[74:75], s[0:1], 40")
    A("s_load_dwordx4 s[76:79], s[0:1], 48")
    A("s_load_dwordx4 s[80:83], s[0:1], 64")
    A("s_load_dwordx2 s[84:85], s[0:1], 96")
    if OPT['prof']:
        A("s_memtime s[98:99]")
    A("v_lshrrev_b32 v3, 6, v0")
    A("v_and_b32 v%d, 63, v0" % V_T0)
    A("s_nop 0")
    A("v_readfirstlane_b32 s%d, v3" % S_W)
    A("s_and_b32 s%d, s2, 1" % S_BLK)
    if OPT['map2']:
        A("s_lshr_b32 s56, s2, 3")
        A("s_and_b32 s%d, s56, 7" % S_HG)
        A("s_lshr_b32 s56, s56, 3")
        A("s_lshr_b32 s58, s2, 1")
        A("s_and_b32 s58, s58, 3")
        A("s_lshl_b32 s58, s58, 2")
        A("s_add_u32 s%d, s58, s56" % S_B)
    else:
        A("s_lshr_b32 s56, s2, 3")
        A("s_and_b32 s57, s56, 3")
        A("s_lshr_b32 s58, s2, 1")
        A("s_and_b32 s58, s58, 1")
        A("s_lshl_b32 s58, s58, 2")
        A("s_add_u32 s%d, s57, s58" % S_HG)
        A("s_lshr_b32 s58, s2, 2")
        A("s_and_b32 s58, s58, 1")
        A("s_lshl_b32 s58, s58, 3")
        A("s_lshr_b32 s56, s56, 2")
        A("s_add_u32 s%d, s58, s56" % S_B)
    A("s_and_b32 s%d, s%d, 1" % (S_TYPE, S_HG))
    if OPT.get('only') is not None:
        A("s_and_b32 s56, s%d, %d" % (S_HG, OPT['only']))
        A("s_cmp_lg_u32 s56, 0")
        A("s_cbranch_scc1 K1_done")
    if OPT.get('force') is not None:
        A("s_mov_b32 s%d, %d" % (S_TYPE, OPT['force']))
    A("s_mov_b32 s%d, 0" % S_RND)
    A("s_lshr_b32 s56, s%d, 1" % S_W)
    A("s_and_b32 s57, s%d, 1" % S_W)
    A("s_cmp_eq_u32 s%d, 0" % S_TYPE)
    A("s_cselect_b32 s59, s%d, s56" % S_W)
    A("s_cselect_b32 s%d, 0, s57" % S_HALF)
    A("s_lshl_b32 s58, s%d, 2" % S_HG)
    A("s_add_u32 s%d, s58, s59" % S_H)
    A("v_and_b32 v1, 15, v%d" % V_T0)
    A("v_lshrrev_b32 v2, 4, v%d" % V_T0)
    A("v_lshlrev_b32 v%d, 4, v%d" % (V_L16, V_T0))
    if OPT['cpf']:
        A("s_getpc_b64 s[60:61]")
        A("s_lshl_b32 s58, s%d, 13" % S_W)
        A("v_lshlrev_b32 v%d, 7, v%d" % (SEL, V_T0))
        A("v_add_u32 v%d, s58, v%d" % (SEL, SEL))
        for k in range(OPT['cpf']):
            A("global_load_dword v%d, v%d, s[60:61]" % (SEL + 1, SEL))
            A("v_add_u32 v%d, 0x8000, v%d" % (SEL, SEL))
    A("v_lshlrev_b32 v3, 8, v1")
    A("v_lshl_add_u32 v%d, v2, 5, v3" % V_OFFK0)
    A("v_add_u32 v%d, 0x1000, v%d" % (V_OFFK1, V_OFFK0))
    A("v_and_b32 v3, 3, v1")
    A("v_lshrrev_b32 v4, 2, v1")
    A("v_lshl_add_u32 v4, v3, 2, v4")
    A("v_lshlrev_b32 v4, 4, v4")
    A("v_lshl_add_u32 v%d, v2, 10, v4" % V_OFFV0)
    A("v_add_u32 v%d, 0x1000, v%d" % (V_OFFV1, V_OFFV0))
    A("v_bfe_u32 v3, v1, 1, 1")
    A("v_lshlrev_b32 v3, 3, v3")
    A("v_lshrrev_b32 v7, 2, v1")
    A("v_lshl_add_u32 v3, v7, 1, v3")
    A("v_and_b32 v7, 1, v1")
    A("v_add_u32 v3, v3, v7")
    A("v_lshlrev_b32 v3, 4, v3")
    A("v_lshl_add_u32 v%d, v2, 16, v3" % V_W)
    A.many(calc_xd(V_XD, 7))
    A("v_lshrrev_b32 v3, 3, v1")
    A("v_lshlrev_b32 v3, 10, v3")
    A("v_and_b32 v7, 7, v1")
    A("v_lshl_add_u32 v3, v7, 6, v3")
    A("v_lshrrev_b32 v7, 1, v1")
    A("v_xor_b32 v7, v7, v2")
    A("v_and_b32 v7, 2, v7")
    A("v_lshl_add_u32 v3, v7, 4, v3")
    A("v_and_b32 v7, 1, v2")
    A("v_lshl_add_u32 v%d, v7, 4, v3" % V_X)
    A("s_mul_i32 s58, s59, 36864")
    A("v_add_u32 v%d, s58, v%d" % (V_Q, V_L16))
    A("v_add_u32 v%d, %d, v%d" % (V_SELA, SEL_OFF, V_L16))
    A("s_mul_i32 s%d, s56, 18432" % S_XL)
    A("s_mul_i32 s58, s57, 9216")
    A("s_add_u32 s%d, s%d, s58" % (S_XL, S_XL))
    A("s_lshl_b32 s%d, s56, 7" % S_XG)
    A("s_mul_i32 s58, s57, 73728")
    A("s_add_u32 s%d, s%d, s58" % (S_XG, S_XG))
    for j in range(8):
        A("s_mov_b32 s%d, %d" % (S_J + j, j * 8192))
    A("s_mov_b32 s%d, 0x05040100" % S_PLO)
    A("s_mov_b32 s%d, 0x07060302" % S_PHI)
    A("s_mov_b32 s%d, 0x%08x" % (S_C, f32bits(SCALE)))
    A("s_mov_b32 s%d, 0x%08x" % (S_C + 1, f32bits(SCALE)))
    A("s_mov_b32 s%d, 0x%08x" % (S_THR, f32bits(THR)))
    A("s_lshl_b32 s%d, s%d, 16" % (S_KOFF, S_HALF))
    A("s_mov_b32 s%d, s%d" % (S_VOFF, S_KOFF))
    A("s_mov_b32 s%d, 0" % S_WOFF)
    A("v_mov_b32 v5, 0x3f803f80")
    A("s_lshl_b32 s56, s%d, 10" % S_W)
    A("v_add_u32 v6, s56, v%d" % V_SELA)
    for k in range(3):
        A("s_add_u32 s57, s%d, %d" % (S_W, 4 * k))
        A("v_cmp_eq_u32 vcc, s57, v1")
        A("s_nop 1")
        for r in range(4):
            A("v_cndmask_b32 v%d, 0, v5, vcc" % (8 + 4 * k + r))
        if k == 2:
            A("s_cmp_lg_u32 s%d, 0" % S_W)
            A("s_cbranch_scc1 K1_selskip")
        A("ds_write_b128 v6, %s offset:%d" % (vr(8 + 4 * k), 4096 * k))
    A.label("K1_selskip")
    A("s_waitcnt lgkmcnt(0)")
    A("s_cmp_eq_u32 s%d, 0" % S_BLK)
    for i in range(10):
        A("s_cselect_b32 s%d, s%d, s%d" % (64 + i, 64 + i, 74 + i))
    A("s_mul_i32 s56, s%d, 147456" % S_B)
    make_srd(A, S_X, 64, 65, "s56", "147456")
    A("s_lshl_b32 s56, s%d, 8" % S_H)
    A("s_lshl_b32 s57, s%d, 7" % S_HALF)
    A("s_add_u32 s56, s56, s57")
    A("s_sub_u32 s57, 4194304, s56")
    make_srd(A, S_WQ, 70, 71, "s56", "s57")
    A("s_lshl_b32 s56, s%d, 5" % S_B)
    A("s_add_u32 s56, s56, s%d" % S_H)
    A("s_lshl_b32 s57, s56, 17")
    make_srd(A, S_K, 66, 67, "s57", "131072")
    make_srd(A, S_V, 68, 69, "s57", "131072")
    A("s_lshl_b32 s57, s%d, 19" % S_HG)
    A("s_lshl_b32 s58, s%d, 8" % S_W)
    A("s_add_u32 s57, s57, s58")
    A("s_sub_u32 s58, 524288, s58")
    make_srd(A, S_WO, 72, 73, "s57", "s58")
    if OPT['v1only']:
        A("s_mov_b32 s56, s%d" % S_HG)
    else:
        A("s_lshr_b32 s56, s%d, 1" % S_HG)
        A("s_lshl_b32 s57, s56, 1")
        A("s_add_u32 s57, s57, 4")
        A("s_cmp_eq_u32 s%d, 0" % S_TYPE)
        A("s_cselect_b32 s56, s56, s57")
    A("s_lshl_b32 s57, s%d, 4" % S_BLK)
    A("s_add_u32 s57, s57, s%d" % S_B)
    A("s_mul_i32 s57, s57, %d" % NSLOT)
    A("s_add_u32 s57, s57, s56")
    A("s_lshl_b32 s57, s57, 2")
    A("s_add_u32 s57, s57, s%d" % S_W)
    A("s_mul_i32 s57, s57, 36864")
    make_srd(A, S_P, 84, 85, "s57", "36864")
    if OPT['prof']:
        A("s_mov_b32 s%d, s98" % STAMP_REGS[0])
    if not OPT['v1only']:
        A("s_cmp_lg_u32 s%d, 0" % S_TYPE)
        A("s_cbranch_scc1 K1_v2_entry")
    base_vm = list(A.vms[0])
    if OPT['rot']:
        A("s_add_u32 s56, s%d, s%d" % (S_HG, S_B))
        A("s_and_b32 s56, s56, 3")
        for j in range(4):
            A("s_add_u32 s57, s56, %d" % j)
            A("s_and_b32 s57, s57, 3")
            A("s_lshl_b32 s57, s57, 8")
            A("s_add_u32 s%d, s%d, s57" % (S_XR + j, S_XG))
        A("s_lshl_b32 s56, s56, 20")
        A("v_add_u32 v%d, s56, v%d" % (V_W, V_W))

    def wq_loads(s):
        return ["W%d|buffer_load_dwordx4 %s, v%d, %s, s%d offen" % (s, vr(RB1[s % 3] + 4 * j), V_W, srd(S_WQ), S_J + j) for j in range(8)] + \
               ["v_add_u32 v%d, 0x40000, v%d" % (V_W, V_W)] + (["v_and_b32 v%d, 0x3fffff, v%d" % (V_W, V_W)] if OPT['rot'] else [])
    A.many(x_dma(0, V_XD) + wq_loads(0) + wq_loads(1) + wq_loads(2) + x_dma(1, V_XD) + x_dma(2, V_XD) + x_dma(3, V_XD))
    A("WAITVM W0")
    for i in range(3):
        A.many(perms(RB1[0], VF, i))
    A("s_barrier")
    stamp(A, 1)
    A.many(xq_reads(lambda t: vr(XB1[0] + 4 * t), 0))
    def qhook(s, sl, when):
        if when == 'pre':
            if OPT['onebar']:
                if s == 3:
                    sl[0].append("WAITVM XS3")
                    sl[0].append("s_barrier")
            elif s in (3, 7, 11):
                sl[0].append("WAITVM XS%d" % ((s + 1) // 4))
                sl[0].append("s_barrier")
            if s == 15:
                sl[0].append("s_barrier")
            return
        if s == 15:
            spread(sl, v_loads(), 1, 8)
            sl[72] += k_loads(KB[1])
            for i in range(OPT['npf2']):
                sl[72] += pf_piece(max(OPT['npf'], 6) + i)
        if s == 6 and OPT['tlb']:
            spread(sl, tlb_touch(), 45, 50)
        if s == 13:
            spread(sl, k_loads(KB[0], "K0"), 9, 17)
        for i in range(pf_steps.count(s)):
            spread(sl, pf_piece(pfi[0]), 45 + 5 * i, 49 + 5 * i); pfi[0] += 1
    npf = OPT['npf']
    pf_steps = [OPT['pfs0'] + (i * (OPT['pfs1'] - OPT['pfs0'] + 1)) // npf for i in range(npf)] if npf else []
    pfi = [0]
    def tlb_touch():
        return ["v_lshlrev_b32 v%d, 5, v%d" % (SEL, V_L16),
                "buffer_load_dword v%d, v%d, %s, 0 offen" % (SEL + 1, SEL, srd(S_P)),
                "v_lshlrev_b32 v%d, 9, v%d" % (SEL + 2, V_L16),
                "buffer_load_dword v%d, v%d, %s, 0 offen" % (SEL + 3, SEL + 2, srd(S_WO))]
    def qfinish(t):
        return conv_tile(t, [168, 180, 192, 0, 12], ('s', S_C),
                         lambda t, s, r: ["ds_write_b128 v%d, %s offset:%d" % (V_Q, vr(r), (t * 4 + s) * 1024)])
    proj_loop(A, 16, RB1, XB1, lambda buf, ks: xq_reads(lambda t: vr(buf + 4 * t), ks), wq_loads, "W", qhook, qfinish)
    pre_attention(A)
    A("s_mov_b32 s%d, 7" % S_CNT)
    if OPT.get('half'):
        A("s_cmp_ge_u32 s%d, 2" % S_W)
        A("s_cselect_b32 s%d, 1, 7" % S_CNT)

    A.label("K1_att")
    A.vms = [["K0"] * 8 + ["V"] * 8 + ["K"] * 8 + ["PF"] * (4 * OPT['npf2'] if OPT['v1only'] else 0)]
    def q_read(t, s):
        return "ds_read_b128 %s, v%d offset:%d" % (vr(QB + 4 * s), V_Q, (t * 4 + s) * 1024)
    def a_mfmas(kb, sb, t, first):
        out = []
        for s in range(4):
            for kt in range(2):
                c = ("0" if first else vr(NM + 4 * t)) if s == 0 else vr(sb + 4 * kt)
                out.append("%s %s, %s, %s, %s" % (MFMA, vr(sb + 4 * kt), vr(kb + 4 * (kt * 4 + s)), vr(QB + 4 * s), c))
        return out
    def c_mfmas(t, pb, first):
        out = ["%s %s, %s, %s, %s" % (MFMA, vr(LS), vr(SEL), vr(pb), vr(LS))]
        for e in range(8):
            c = "0" if first else acc(t, e)
            out.append("%s %s, %s, %s, %s" % (MFMA, acc(t, e), vr(VF + 4 * e), vr(pb), c))
        return out
    stamp(A, 2, True)
    A.many([q_read(0, s) for s in range(4)])
    A("WAITVM K0 0")
    A.many(a_mfmas(KB[0], SB[0], 0, True))
    A.many([q_read(1, s) for s in range(4)])
    A("WAITVM V")
    for i in range(4):
        A.many(perms(VR, VF, i))
    if OPT['v1early']:
        A.many(v_loads())

    def epi_bperm(t):
        return "ds_bpermute_b32 v%d, v%d, v%d offset:%d" % (NM + 4 * t + 2, V_X, LS + (t & 3), 64 * (t >> 2))
    def epi_rcp(t):
        return "v_rcp_f32 v%d, v%d" % (NM + 4 * t, NM + 4 * t + 2)
    def epi_conv(t):
        return conv_tile(t, [32, 44], ('p', NM + 4 * t),
                         lambda t, s, r: ["ds_write_b128 v%d, %s offset:%d" % (V_Q, vr(r), (t * 4 + s) * 1024)])

    def iteration(A, bpar, t, kind, site):
        par = (bpar + t) & 1
        has_a = not (kind == 'last' and t == 8) and kind != 'drain'
        has_c = not (kind == 'first' and t == 0)
        has_b = kind != 'drain'
        amf = a_mfmas(KB[bpar] if t < 8 else KB[bpar ^ 1], SB[par ^ 1], (t + 1) % 9, kind == 'first' and t < 8) if has_a else []
        cmf = c_mfmas((t - 1) % 9, PB[par ^ 1], kind == 'first') if has_c else []
        mf = amf + cmf
        nm = len(mf); na = len(amf)
        sl = [[] for _ in range(nm + 1)]
        sl[0].append("WAITVM K 0" if (t == 8 and has_a) else "s_waitcnt lgkmcnt(0)")
        S = SB[par]; P = PB[par]; nmr = NM + 4 * t
        def G(x):
            return min(nm, (x * nm) // 17)
        if has_b:
            ex = ["v_exp_f32 v%d, v%d" % (S + i, S + i) for i in range(8)]
            cv = ["v_cvt_pk_bf16_f32 v%d, v%d, v%d" % (P + p, S + 2 * p, S + 2 * p + 1) for p in range(4)]
            if kind == 'first':
                pre = max8(V_T0, S) + xlane_reduce(V_T0, V_T1, "v_max_f32")
                pre += ["v_sub_f32 v%d, 0, v%d" % (nmr + r, V_T0) for r in range(4)]
                sb = ["v_sub_f32 v%d, v%d, v%d" % (S + i, S + i, V_T0) for i in range(8)]
                spread(sl, pre, G(0), G(5))
                spread(sl, sb, G(6), G(8))
                spread(sl, ex, G(9), G(15))
                spread(sl, ["s_nop 0"] + cv, G(16), G(17))
            else:
                spread(sl, max8(V_T0, S) + ["v_cmp_lt_f32 vcc, s%d, v%d" % (S_THR, V_T0)], G(0), G(2))
                sl[G(4)].append("s_cbranch_vccnz K1_rare_%s" % site)
                sl[G(4)].append("K1_back_%s:" % site)
                rare_sites.append((site, t, S))
                spread(sl, ex, G(4), G(12))
                spread(sl, cv, G(13), G(16))
        if has_a and (kind in ('first', 'mid') or (kind == 'last' and t <= 6)):
            for s in range(4):
                sl[2 * s + 2].append(q_read((t + 2) % 9, s))
        if has_b:
            sl[min(nm, na + 2)].append("ds_read_b128 %s, v%d offset:%d" % (vr(SEL), V_SELA, t * 1024))
        if t == 8 and kind in ('first', 'mid') and not OPT['kt7']:
            spread(sl, k_loads(KB[bpar]), G(2), G(11))
        if t == 8 and kind in ('first', 'mid') and OPT['kt7']:
            sl[1].append("RETAG KN K")
        if kind != 'first' and kind != 'drain':
            if t == 0:
                sl[na + 2].append("WAITVM V")
                spread(sl, perms(VR, VF, 0), na + 3, na + 5)
                spread(sl, perms(VR, VF, 1), na + 5, na + 7)
                spread(sl, perms(VR, VF, 2), na + 7, na + 9)
            if t == 1:
                spread(sl, perms(VR, VF, 3), 1, 4)
        if t == 2 and kind in ('first', 'mid') and not (OPT['v1early'] and kind == 'first') and not OPT['vt1']:
            spread(sl, v_loads(), G(2), G(11))
        if t == 1 and kind == 'mid' and OPT['vt1']:
            spread(sl, v_loads(), G(6), G(15))
        if t == 7 and kind in ('first', 'mid') and OPT['kt7']:
            spread(sl, k_loads(KB[bpar], "KN"), na + 1, nm)
        if OPT['apf'] and t == 4 and kind in ('first', 'mid'):
            pf = []
            for d in range(OPT['apf']):
                pf += ["s_add_u32 s56, s%d, %d" % (S_KOFF, 8192 * (OPT['apfd'] + d)), "s_and_b32 s56, s56, 0x1ffff",
                       "PF|buffer_load_dword v%d, v%d, %s, s56 offen" % (V_XD, V_W, srd(S_K)),
                       "s_add_u32 s56, s%d, %d" % (S_VOFF, 8192 * (OPT['apfd'] + d)), "s_and_b32 s56, s56, 0x1ffff",
                       "PF|buffer_load_dword v%d, v%d, %s, s56 offen" % (V_XD, V_W, srd(S_V))]
            spread(sl, pf, G(2), G(11))
        if kind == 'last' and t == 1:
            spread(sl, (calc_wo2 if OPT['o2'] else calc_wo)(V_W, V_XD, V_T1), G(6), G(12))
        if kind == 'last' and t == 2:
            spread(sl, (wo2_loads(0) + wo2_loads(1)) if OPT['o2'] else wo_loads(0), G(2), G(11))
        if not OPT['epi']:
            if kind == 'last' and t == 4:
                spread(sl, wo_loads(1), G(2), G(11))
            if kind == 'last' and t == 8:
                spread(sl, wo_loads(2), G(2), G(8))
        elif kind in ('last', 'drain'):
            tt = t if kind == 'last' else 9
            if tt == 0:
                sl[1] += ["v_and_b32 v%d, 0xf0, v%d" % (V_X, V_L16), "v_lshrrev_b32 v%d, 2, v%d" % (V_X, V_X)]
            if tt == 8:
                spread(sl, (wo2_loads(2) + wo2_loads(3)) if OPT['o2'] else wo_loads(1), G(2), G(8))
            if tt >= 1:
                sl[nm].append(epi_bperm(tt - 1))
            if tt >= 2:
                sl[0].append(epi_rcp(tt - 2))
                spread(sl, epi_conv(tt - 2), 2, nm)
        if kind == 'first' and t == 0:
            sl[nm].append("s_nop 3")
        if OPT.get('strip') and kind == 'mid':
            pats = {"exp": ("v_exp",), "ds": ("ds_read",), "br": ("s_cbranch", "v_cmp"), "max": ("v_max",), "cvt": ("v_cvt",),
                    "perm": ("v_perm",), "ld": ("K|", "KN|", "V|", "WAITVM", "RETAG"), "valu": ("v_exp", "v_max", "v_cvt", "v_cmp", "s_cbranch", "v_perm")}
            drop = sum((pats[p] for p in OPT['strip'].split("+")), ())
            sl = [[x for x in g if not x.startswith(drop)] for g in sl]
        if OPT.get('nocomp') and kind == 'mid':
            keep = OPT['nocomp']
            mf = [m if (keep == 2) else "s_nop 0" for m in mf]
            sl = [[x for x in g if x.startswith(("WAITVM", "K|", "V|", "s_add", "s_and", "K1_back", "s_cbranch"))] for g in sl]
        weave(A, mf, sl)

    for t in range(9):
        iteration(A, 0, t, 'first', None)
    A.label("K1_aloop")
    w0 = len(A.waits)
    for t in range(9):
        iteration(A, 1, t, 'mid', "o%d" % t)
    for t in range(9):
        iteration(A, 0, t, 'mid', "e%d" % t)
    w1 = len(A.waits)
    B = Asm(); B.vms = [list(A.vms[0])]; saved = list(rare_sites)
    for t in range(9):
        iteration(B, 1, t, 'mid', "o%d" % t)
    for t in range(9):
        iteration(B, 0, t, 'mid', "e%d" % t)
    assert B.waits == A.waits[w0:w1], (B.waits, A.waits[w0:w1])
    del rare_sites[len(saved):]
    A("s_sub_u32 s%d, s%d, 1" % (S_CNT, S_CNT))
    A("s_cmp_lg_u32 s%d, 0" % S_CNT)
    A("s_cbranch_scc1 K1_aloop")
    A.vms[0].append("V")
    for t in range(9):
        iteration(A, 1, t, 'last', "l%d" % t)
    iteration(A, 0, 0, 'drain', None)
    stamp(A, 3, True)
    if OPT['epi']:
        LB = 144
        att_vm = list(A.vms[0])
        A("s_waitcnt lgkmcnt(0)")
        A(epi_rcp(8))
        A("s_nop 0")
        A.many(epi_conv(8))
        if not OPT['o2']:
            A.many(wo_loads(2))
    else:
        LB = 144
        A("v_and_b32 v%d, 0xf0, v%d" % (V_T0, V_L16))
        A("v_lshrrev_b32 v%d, 2, v%d" % (V_T0, V_T0))
        A("s_nop 4")
        for t in range(9):
            A("ds_bpermute_b32 v%d, v%d, v%d offset:%d" % (LB + t, V_T0, LS + (t & 3), 64 * (t >> 2)))
        att_vm = list(A.vms[0])
        if not OPT['v1only']:
            A("s_cmp_lg_u32 s%d, 0" % S_TYPE)
            A("s_cbranch_scc1 K1_v2_combine")

        RL = 200
        A("s_waitcnt lgkmcnt(0)")
        for t in range(9):
            A("v_rcp_f32 v%d, v%d" % (RL + t, LB + t))
        for t in range(9):
            A.many(conv_tile(t, [128, 156, 168, 180], ('v', RL + t),
                             lambda t, s, r: ["ds_write_b128 v%d, %s offset:%d" % (V_Q, vr(r), (s * 9 + t) * 1024)]))
    A("v_mov_b32 v%d, v%d" % (V_XO, V_L16))
    if not OPT['o2']:
        A("WAITVM O0")
        for i in range(3):
            A.many(perms(RB2[0], VF, i))
    A("s_waitcnt lgkmcnt(0)")
    A("s_barrier")
    stamp(A, 4)
    def xo_reads1(buf, ks):
        if OPT['epi']:
            return ["ds_read_b128 %s, v%d offset:%d" % (vr(buf + 4 * t), V_XO, t * 4096 + (ks & 3) * 1024) for t in range(9)] + \
                   (["v_add_u32 v%d, 36864, v%d" % (V_XO, V_XO)] if (ks & 3) == 3 else [])
        return ["ds_read_b128 %s, v%d offset:%d" % (vr(buf + 4 * t), V_XO, t * 1024) for t in range(9)] + \
               ["v_add_u32 v%d, 9216, v%d" % (V_XO, V_XO)]
    if OPT['o2']:
        oproj2(A)
    else:
        A.many(xo_reads1(XB2[0], 0))
        proj_loop(A, 16, RB2, XB2, xo_reads1, wo_loads, "O", lambda s, sl, when: None, ofinish)
    if OPT['prof']:
        A("s_waitcnt vmcnt(0)")
    stamp(A, 5)
    A.label("K1_end")
    stamp_flush(A, 16)
    A.label("K1_done")
    A("s_endpgm")

    for site, t, S in rare_sites:
        nmr = NM + 4 * t
        A.label("K1_rare_%s" % site)
        A.many(xlane_reduce(V_T0, V_T1, "v_max_f32"))
        A("v_max_f32 v%d, 0, v%d" % (V_T0, V_T0))
        A("v_sub_f32 v%d, 0, v%d" % (V_T1, V_T0))
        A("v_exp_f32 v%d, v%d" % (V_T1, V_T1))
        for r in range(4):
            A("v_sub_f32 v%d, v%d, v%d" % (nmr + r, nmr + r, V_T0))
        for i in range(8):
            A("v_sub_f32 v%d, v%d, v%d" % (S + i, S + i, V_T0))
        A("s_mov_b32 s56, 0x%x" % ((0xffff << (16 * (t >> 2))) & 0xffffffff))
        A("s_mov_b32 s57, 0x%x" % ((0xffff << (16 * (t >> 2))) >> 32))
        A("v_cndmask_b32 v%d, 1.0, v%d, s[56:57]" % (V_T0, V_T1))
        A("v_mul_f32 v%d, v%d, v%d" % (LS + (t & 3), LS + (t & 3), V_T0))
        for e in range(8):
            for r in range(4):
                reg = acc_reg(t, e, r)
                if reg[0] == 'a':
                    A("v_accvgpr_read_b32 v%d, %s" % (V_T0, reg))
                    A("v_mul_f32 v%d, v%d, v%d" % (V_T0, V_T0, V_T1))
                    A("v_accvgpr_write_b32 %s, v%d" % (reg, V_T0))
                else:
                    A("v_mul_f32 %s, %s, v%d" % (reg, reg, V_T1))
        A("s_nop 1")
        A("s_branch K1_back_%s" % site)

def gen_k2(A):
    A.raw(".globl %s" % K2)
    A.raw(".p2align 8")
    A.raw(".type %s,@function" % K2)
    A.label(K2)
    A("s_cmp_ge_u32 s2, %d" % (0 if OPT.get('k2empty') else 1152))
    A("s_cbranch_scc1 K2_done")
    A("s_load_dwordx2 s[64:65], s[0:1], 80")
    A("s_load_dwordx2 s[66:67], s[0:1], 96")
    if OPT['map2']:
        A("s_lshr_b32 s20, s2, 3")
        A("s_mul_hi_u32 s4, s20, 0x71c71c8")
        A("s_mul_i32 s5, s4, 36")
        A("s_sub_u32 s5, s20, s5")
        A("s_and_b32 s21, s2, 1")
        A("s_lshl_b32 s21, s21, 4")
        A("s_add_u32 s4, s4, s21")
        A("s_lshr_b32 s21, s2, 1")
        A("s_and_b32 s21, s21, 3")
        A("s_lshl_b32 s21, s21, 2")
        A("s_add_u32 s4, s4, s21")
    else:
        A("s_mul_hi_u32 s4, s2, 0x71c71c8")
        A("s_mul_i32 s5, s4, 36")
        A("s_sub_u32 s5, s2, s5")
    A("v_lshrrev_b32 v1, 6, v0")
    A("v_and_b32 v2, 63, v0")
    A("s_nop 0")
    A("v_readfirstlane_b32 s6, v1")
    A("s_lshl_b32 s5, s5, 2")
    A("s_add_u32 s5, s5, s6")
    A("s_mul_hi_u32 s7, s5, 0x1c71c71d")
    A("s_mul_i32 s12, s7, 9")
    A("s_sub_u32 s12, s5, s12")
    A("v_lshlrev_b32 v3, 4, v2")
    A("s_waitcnt lgkmcnt(0)")
    A("s_mul_i32 s13, s4, %d" % (NSLOT * PART_BYTES))
    A("s_lshl_b32 s14, s5, 10")
    A("s_add_u32 s13, s13, s14")
    A("s_add_u32 s8, s66, s13")
    A("s_addc_u32 s9, s67, 0")
    A("s_mov_b32 s10, %d" % ((NSLOT - 1) * PART_BYTES + 1024))
    A("s_mov_b32 s11, 0x00020000")
    for h in range(NSLOT):
        A("s_mov_b32 s15, %d" % (h * PART_BYTES))
        A("buffer_load_dwordx4 %s, v3, s[8:11], s15 offen%s" % (vr(8 + 4 * h), OPT['rdf']))
    A("s_and_b32 s13, s4, 15")
    A("s_lshr_b32 s14, s4, 4")
    A("s_mul_i32 s13, s13, 144")
    A("s_lshl_b32 s12, s12, 4")
    A("s_add_u32 s13, s13, s12")
    A("s_lshl_b32 s13, s13, 11")
    A("s_lshl_b32 s14, s14, 10")
    A("s_add_u32 s13, s13, s14")
    if OPT['o2']:
        A("s_lshr_b32 s14, s7, 1")
        A("s_lshl_b32 s14, s14, 7")
        A("s_add_u32 s13, s13, s14")
        A("s_and_b32 s14, s7, 1")
        A("s_lshl_b32 s14, s14, 4")
        A("s_add_u32 s13, s13, s14")
    else:
        A("s_lshl_b32 s14, s7, 6")
        A("s_add_u32 s13, s13, s14")
    A("v_and_b32 v4, 15, v2")
    A("v_lshrrev_b32 v5, 4, v2")
    A("v_lshlrev_b32 v4, 11, v4")
    A("v_lshl_add_u32 v4, v5, %d, v4" % (5 if OPT['o2'] else 4))
    A("s_mov_b32 s16, s64")
    A("s_mov_b32 s17, s65")
    A("s_mov_b32 s18, %d" % (16 * 144 * 1024 * 2))
    A("s_mov_b32 s19, 0x00020000")
    R = 8 + 4 * NSLOT
    for h in range(NSLOT):
        A("s_waitcnt vmcnt(%d)" % (NSLOT - 1 - h))
        for p in range(4):
            src = 8 + 4 * h + p
            if h == 0:
                A("v_lshlrev_b32 v%d, 16, v%d" % (R + 2 * p, src))
                A("v_and_b32 v%d, 0xffff0000, v%d" % (R + 1 + 2 * p, src))
            else:
                A("v_lshlrev_b32 v%d, 16, v%d" % (R + 8, src))
                A("v_and_b32 v%d, 0xffff0000, v%d" % (R + 9, src))
                A("v_add_f32 v%d, v%d, v%d" % (R + 2 * p, R + 2 * p, R + 8))
                A("v_add_f32 v%d, v%d, v%d" % (R + 1 + 2 * p, R + 1 + 2 * p, R + 9))
    for p in range(4):
        A("v_cvt_pk_bf16_f32 v%d, v%d, v%d" % (R + 12 + p, R + 2 * p, R + 1 + 2 * p))
    A("buffer_store_dwordx4 %s, v4, s[16:19], s13 offen" % vr(R + 12))
    A.label("K2_done")
    A("s_endpgm")
    return R + 16

def descriptor(A, name, vgpr, accum):
    A.raw(".amdhsa_kernel %s" % name)
    A.raw("  .amdhsa_next_free_vgpr %d" % vgpr)
    A.raw("  .amdhsa_next_free_sgpr 102")
    A.raw("  .amdhsa_accum_offset %d" % accum)
    A.raw("  .amdhsa_group_segment_fixed_size 0")
    A.raw("  .amdhsa_kernarg_size 104")
    A.raw("  .amdhsa_user_sgpr_count 2")
    A.raw("  .amdhsa_user_sgpr_kernarg_segment_ptr 1")
    A.raw("  .amdhsa_system_sgpr_workgroup_id_x 1")
    A.raw(".end_amdhsa_kernel")

def main(path):
    A = Asm()
    hdr = open("cdna_kernels/%s.s.ref" % NAME).read().splitlines()
    for ln in hdr:
        if ln.startswith("; @launch"):
            break
        if ln.startswith("; Override") or ln.startswith("; grid=ceil"):
            continue
        A.raw(ln)
    A.raw("; @launch kernel=%s grid=(256,1,1) block=(256,1,1) lds=%d" % (K1, LDS_BYTES))
    A.raw("; @launch kernel=%s grid=(1152,1,1) block=(256,1,1) lds=0" % K2)
    A.raw('.amdgcn_target "amdgcn-amd-amdhsa--gfx950"')
    A.raw(".text")
    gen_k1(A)
    nv = gen_k2(A)
    A.raw('.section .rodata,"a"')
    A.raw(".p2align 6")
    descriptor(A, K1, 512, 256)
    A.raw(".p2align 6")
    descriptor(A, K2, nv, (nv + 3) // 4 * 4)
    open(path, "w").write(A.text())

if __name__ == "__main__":
    path = "cdna_kernels/%s.s" % NAME
    for a in sys.argv[1:]:
        if a.startswith("--"):
            k = a[2:]
            if "=" in k:
                k, v = k.split("="); OPT[k] = int(v) if v.isdigit() else v
            else:
                OPT[k] = True
        else:
            path = a
    if OPT['v1only']:
        OPT['force'] = 0; NSLOT = 8; OPT['cpf'] = min(OPT['cpf'], 2)
    if OPT['rdf']: OPT['rdf'] = " " + OPT['rdf'].replace("+", " ")
    if OPT['stf']: OPT['stf'] = " " + OPT['stf'].replace("+", " ")
    if OPT['kvf']: OPT['kvf'] = " " + OPT['kvf'].replace("+", " ")
    main(path)
```

```python
import sys, struct

NAME = "concat_heads__gqa_block_cached__gqa_block_cached__near_ridge"
K1 = NAME + "_kernel"
K2 = "reduce_kernel"

SCALE = 0.08838834764831845 * 1.4426950408889634
THR = 16.0
PART_BYTES = 147456
NSLOT = 12
SEL_OFF = 147456
ML_OFF = SEL_OFF + 9 * 1024
LDS_BYTES = ML_OFF + 4 * 1280

OPT = dict(tlb=0, nopk=0, o2=0, onebar=1, epi=1, rdf='nt', v1early=1, vt1=1, kt7=1, rot=0, stf='sc1', map2=1, v1only=1, npf=0, pfs0=2, pfs1=11, npf2=0, apf=0, apfd=0, kvf='nt', prof=False, noadv=False, cpf=3, tmask=1, tval=1)

def f32bits(x):
    return struct.unpack("<I", struct.pack("<f", x))[0]

class Asm:
    def __init__(self):
        self.lines = []
        self.vms = [[]]
        self.waits = []
    def __call__(self, s):
        if s.endswith(":"):
            self.lines.append(s); return
        if s.startswith("RETAG"):
            _, a, b = s.split()
            self.vms = [[b if t == a else t for t in vm] for vm in self.vms]
            return
        if s.startswith("WAITVM"):
            parts = s.split()
            tag = parts[1]
            n = 63
            for vm in self.vms:
                assert tag in vm, tag
                idx = max(i for i, t in enumerate(vm) if t == tag)
                n = min(n, len(vm) - 1 - idx)
            self.waits.append(n)
            s = "s_waitcnt vmcnt(%d)" % n
            if len(parts) > 2:
                s += " lgkmcnt(%s)" % parts[2]
            self.lines.append("    " + s); return
        tag = None
        if "|" in s:
            tag, s = s.split("|", 1)
        elif s.startswith("buffer_") or s.startswith("global_"):
            tag = "-"
        if tag is not None and not tag.startswith("?"):
            for i, vm in enumerate(self.vms):
                if getattr(self, "skipN", False) and tag.startswith("NO") and i > 0:
                    continue
                vm.append(tag)
        self.lines.append("    " + s)
    def many(self, l):
        for s in l: self(s)
    def label(self, l):
        self.lines.append(l + ":")
    def raw(self, s):
        self.lines.append(s)
    def text(self):
        return "\n".join(self.lines) + "\n"

def vr(b, n=4):
    return "v[%d:%d]" % (b, b + n - 1)
def ar(b, n=4):
    return "a[%d:%d]" % (b, b + n - 1)

def spread(slots, instrs, g0, g1):
    n = len(instrs); m = g1 - g0 + 1
    for i, ins in enumerate(instrs):
        slots[g0 + (i * m) // n].append(ins)

def weave(A, mfmas, slots):
    for i, m in enumerate(mfmas):
        for s in slots[i]: A(s)
        A(m)
    for s in slots[len(mfmas)]: A(s)

MFMA = "v_mfma_f32_16x16x32_bf16"

KB = [32, 0]
VF = 64
VR = 96
QB = 128
SB = [144, 152]
PB = [160, 164]
NM = 168
LS, SEL = 204, 208
V_OFFK0, V_OFFK1, V_OFFV0, V_OFFV1, V_Q, V_T0, V_T1, V_L16, V_W, V_X, V_XD, V_SELA = range(212, 224)
ACCV = 224
RB1, XB1 = [0, 32, 168], [96, 132]
RB2, XB2 = [32, 96, 0], [128, 164]
RB3, XA3 = [128, 144, 160, 176], [128, 164]
V_XD2, V_XO = 210, 211

def acc(t, e):
    u = t * 8 + e
    return ar(4 * u) if u < 64 else vr(ACCV + 4 * (u - 64))
def acc_reg(t, e, r):
    u = t * 8 + e
    return "a%d" % (4 * u + r) if u < 64 else "v%d" % (ACCV + 4 * (u - 64) + r)
def acc3(t, e):
    return ar(16 * t + 4 * e) if t < 8 else vr(ACCV + 4 * e)
def acc3_reg(t, e, r):
    return "a%d" % (16 * t + 4 * e + r) if t < 8 else "v%d" % (ACCV + 4 * e + r)

S_X, S_WQ, S_K, S_V, S_WO, S_P = 8, 12, 16, 20, 24, 28
S_HG, S_WOFF, S_TYPE, S_RND = 32, 33, 34, 35
S_J = 36
S_PLO, S_PHI, S_CNT, S_KOFF, S_VOFF, S_HALF, S_THR = 44, 45, 46, 47, 48, 49, 50
S_BLK, S_B, S_H, S_W = 51, 52, 53, 54
S_XL, S_XG, S_C = 4, 5, 6

def srd(s):
    return "s[%d:%d]" % (s, s + 3)

def perms(raw, frag, i, w=4):
    out = []
    for p in range(4):
        a = raw + w * (2 * p) + i
        b = raw + w * (2 * p + 1) + i
        out.append("v_perm_b32 v%d, v%d, v%d, s%d" % (frag + 4 * (2 * i) + p, b, a, S_PLO))
        out.append("v_perm_b32 v%d, v%d, v%d, s%d" % (frag + 4 * (2 * i + 1) + p, b, a, S_PHI))
    return out

def adv(s, step=8192):
    if OPT['noadv']: return []
    return ["s_add_u32 s%d, s%d, %d" % (s, s, step), "s_and_b32 s%d, s%d, 0x1ffff" % (s, s)]

def k_loads(buf, tag="K"):
    out = []
    for kt in range(2):
        for s in range(4):
            out.append("%s|buffer_load_dwordx4 %s, v%d, %s, s%d offen offset:%d" % (
                tag, vr(buf + 4 * (kt * 4 + s)), V_OFFK0 + kt, srd(S_K), S_KOFF, 128 * (s >> 1) + 16 * (s & 1)) + OPT['kvf'])
    return out + adv(S_KOFF)

def v_loads(tag="V"):
    out = []
    for j in range(8):
        out.append("%s|buffer_load_dwordx4 %s, v%d, %s, s%d offen offset:%d" % (
            tag, vr(VR + 4 * j), V_OFFV0 + (j >> 2), srd(S_V), S_VOFF, (j & 3) * 256) + OPT['kvf'])
    return out + adv(S_VOFF)

def pf_piece(i):
    j = i >> 1
    out = ["s_mov_b32 s55, %d" % ((j >> 1) * 8192 + (i & 1) * 4096)]
    for q in range(4):
        out.append("PF|buffer_load_dwordx4 %s, v%d, %s, s55 offen offset:%d" % (vr(SEL), V_L16, srd(S_V if j & 1 else S_K), q * 1024))
    return out

def xlane_reduce(reg, tmp, op):
    return ["v_mov_b32 v%d, v%d" % (tmp, reg), "s_nop 1",
            "v_permlane16_swap_b32 v%d, v%d" % (tmp, reg), "s_nop 1",
            "%s v%d, v%d, v%d" % (op, reg, reg, tmp),
            "v_mov_b32 v%d, v%d" % (tmp, reg), "s_nop 1",
            "v_permlane32_swap_b32 v%d, v%d" % (tmp, reg), "s_nop 1",
            "%s v%d, v%d, v%d" % (op, reg, reg, tmp)]

def max8(dst, S):
    return ["v_max3_f32 v%d, v%d, v%d, v%d" % (dst, S, S + 1, S + 2),
            "v_max3_f32 v%d, v%d, v%d, v%d" % (dst, dst, S + 3, S + 4),
            "v_max3_f32 v%d, v%d, v%d, v%d" % (dst, dst, S + 5, S + 6),
            "v_max_f32 v%d, v%d, v%d" % (dst, dst, S + 7)]

def calc_xd(dst, t0):
    return ["v_bfe_u32 v%d, v%d, 6, 3" % (dst, V_L16),
            "v_lshlrev_b32 v%d, 10, v%d" % (dst, dst),
            "v_lshrrev_b32 v%d, 9, v%d" % (t0, V_L16),
            "v_lshl_add_u32 v%d, v%d, 6, v%d" % (dst, t0, dst),
            "v_lshrrev_b32 v%d, 3, v%d" % (t0, V_L16),
            "v_xor_b32 v%d, v%d, v%d" % (t0, t0, V_L16),
            "v_and_b32 v%d, 32, v%d" % (t0, t0),
            "v_add_u32 v%d, v%d, v%d" % (dst, t0, dst),
            "v_and_b32 v%d, 16, v%d" % (t0, V_L16),
            "v_add_u32 v%d, v%d, v%d" % (dst, t0, dst)]
def calc_wo(dst, dst2, t0):
    return ["v_bfe_u32 v%d, v%d, 4, 2" % (dst, V_L16),
            "v_lshlrev_b32 v%d, 6, v%d" % (dst, dst),
            "v_bfe_u32 v%d, v%d, 6, 2" % (t0, V_L16),
            "v_lshl_add_u32 v%d, v%d, 4, v%d" % (dst, t0, dst),
            "v_lshrrev_b32 v%d, 8, v%d" % (t0, V_L16),
            "v_lshl_add_u32 v%d, v%d, 13, v%d" % (dst, t0, dst),
            "v_add_u32 v%d, 0x1000, v%d" % (dst2, dst)]
def calc_w2(dst, t0):
    return ["v_bfe_u32 v%d, v%d, 4, 4" % (dst, V_L16),
            "v_lshlrev_b32 v%d, 3, v%d" % (dst, dst),
            "v_lshrrev_b32 v%d, 8, v%d" % (t0, V_L16),
            "v_lshl_add_u32 v%d, v%d, 16, v%d" % (dst, t0, dst),
            "v_add_u32 v%d, 0x200000, v%d" % (dst, dst)]

PROF_OFF = 64 << 20
STAMP_REGS = list(range(64, 84)) + list(range(86, 98))
def stamp(A, k, rnd=False):
    if not OPT['prof']:
        return
    A("s_memtime s[100:101]")
    A("s_waitcnt lgkmcnt(0)")
    if rnd:
        A("s_cmp_eq_u32 s%d, 0" % S_RND)
        A("s_cselect_b32 s%d, s100, s%d" % (STAMP_REGS[k], STAMP_REGS[k]))
        A("s_cselect_b32 s%d, s%d, s100" % (STAMP_REGS[k + 8], STAMP_REGS[k + 8]))
    else:
        A("s_mov_b32 s%d, s100" % STAMP_REGS[k])
def stamp_flush(A, n):
    if not OPT['prof']:
        return
    A("s_lshl_b32 s56, s2, 2")
    A("s_add_u32 s56, s56, s%d" % S_W)
    A("s_lshl_b32 s56, s56, 7")
    A("s_add_u32 s56, s56, %d" % PROF_OFF)
    A("s_add_u32 s60, s84, s56")
    A("s_addc_u32 s61, s85, 0")
    A("s_mov_b32 s62, 128")
    A("s_mov_b32 s63, 0x00020000")
    A("v_mov_b32 v1, 0")
    for k in range(n):
        A("v_mov_b32 v%d, s%d" % (2 + k, STAMP_REGS[k]))
        A("buffer_store_dword v%d, v1, s[60:63], 0 offen offset:%d" % (2 + k, 4 * k))

def make_srd(A, s, lo, hi, off, size):
    A("s_add_u32 s%d, s%d, %s" % (s, lo, off)); A("s_addc_u32 s%d, s%d, 0" % (s + 1, hi))
    A("s_mov_b32 s%d, %s" % (s + 2, size))
    A("s_mov_b32 s%d, 0x00020000" % (s + 3))

S_XR = 60
def x_dma(stage, areg, cond=""):
    out = []
    for i in range(9):
        out.append("s_add_u32 m0, s%d, %d" % (S_XL, stage * 36864 + i * 1024))
        if OPT['rot']:
            out.append("s_add_u32 s58, s%d, %d" % (S_XR + stage, i * 8192))
        else:
            out.append("s_add_u32 s58, s%d, %d" % (S_XG, i * 8192 + stage * 256))
        out.append("%sXS%d|buffer_load_dwordx4 v%d, %s, s58 offen lds" % (cond, stage, areg, srd(S_X)))
    return out

def xq_reads(dst, ks, wrap=False):
    out = ["ds_read_b128 %s, v%d offset:%d" % (dst(t), V_X, t * 2048 + (ks & 1) * 512) for t in range(9)]
    if ks & 1:
        out.append("v_add_u32 v%d, 0x%x, v%d" % (V_X, (18432 - 147456) & 0xffffffff if wrap else 18432, V_X))
    return out

def conv_tile(t, tmp, scale, sink, areg=acc_reg):
    out = []
    for s in range(4):
        b = tmp[(4 * t + s) % len(tmp)]
        inv = areg(t, 0, s)[0] == 'v'
        if not inv:
            for e in range(8):
                out.append("v_accvgpr_read_b32 v%d, %s" % (b + e, areg(t, e, s)))
            if scale and scale[0] == 's' and OPT['nopk']:
                for e in range(8):
                    out.append("v_mul_f32 v%d, s%d, v%d" % (b + e, scale[1], b + e))
            elif scale and scale[0] == 's':
                for p in range(4):
                    out.append("v_pk_mul_f32 %s, %s, s[%d:%d]" % (vr(b + 2 * p, 2), vr(b + 2 * p, 2), scale[1], scale[1] + 1))
            elif scale and scale[0] == 'p' and not OPT['nopk']:
                for p in range(4):
                    out.append("v_pk_mul_f32 %s, %s, %s op_sel_hi:[1,0]" % (vr(b + 2 * p, 2), vr(b + 2 * p, 2), vr(scale[1], 2)))
            elif scale:
                for e in range(8):
                    out.append("v_mul_f32 v%d, v%d, v%d" % (b + e, scale[1], b + e))
            src = [b + e for e in range(8)]
        elif scale:
            for e in range(8):
                out.append("v_mul_f32 v%d, %s%d, %s" % (b + e, 's' if scale[0] == 's' else 'v', scale[1], areg(t, e, s)))
            src = [b + e for e in range(8)]
        else:
            src = [int(areg(t, e, s)[1:]) for e in range(8)]
        for p in range(4):
            out.append("v_cvt_pk_bf16_f32 v%d, v%d, v%d" % (b + 8 + p, src[2 * p], src[2 * p + 1]))
        out += sink(t, s, b + 8)
    return out

def proj_loop(A, nsteps, RB, XB, xreads, wloads, wtag, hook, finish):
    L = nsteps - 1
    for s in range(nsteps):
        par = s & 1
        mf = []
        if s < L:
            for e in range(8):
                for t in range(9):
                    c = "0" if s == 0 else acc(t, e)
                    mf.append("%s %s, %s, %s, %s" % (MFMA, acc(t, e), vr(VF + 4 * e), vr(XB[par] + 4 * t), c))
        else:
            for t in range(9):
                for e in range(8):
                    mf.append("%s %s, %s, %s, %s" % (MFMA, acc(t, e), vr(VF + 4 * e), vr(XB[par] + 4 * t), acc(t, e)))
        sl = [[] for _ in range(73)]
        sl[0].append("s_waitcnt lgkmcnt(0)")
        spread(sl, perms(RB[s % 3], VF, 3), *((1, 8) if s < L else (0, 3)))
        hook(s, sl, 'pre')
        if s < L:
            spread(sl, xreads(XB[par ^ 1], s + 1), 1, 10)
        if s + 3 < nsteps:
            spread(sl, wloads(s + 3), 9, 17)
        if s < L:
            sl[18].append("WAITVM %s%d" % (wtag, s + 1))
            spread(sl, perms(RB[(s + 1) % 3], VF, 0), 19, 26)
            spread(sl, perms(RB[(s + 1) % 3], VF, 1), 37, 44)
            spread(sl, perms(RB[(s + 1) % 3], VF, 2), 55, 62)
        else:
            for t in range(8):
                spread(sl, finish(t), 8 * (t + 1) + 2, min(72, 8 * (t + 2) + 1))
            sl[72] += finish(8)
        hook(s, sl, 'post')
        weave(A, mf, sl)

def wo_loads(s):
    global RB2
    out = []
    for j in range(8):
        out.append("O%d|buffer_load_dwordx4 %s, v%d, %s, s%d offen offset:%d" % (
            s, vr(RB2[s % 3] + 4 * j), V_W if j < 4 else V_XD, srd(S_WO), S_WOFF, (j & 3) * 1024))
    return out + ["s_add_u32 s%d, s%d, 32768" % (S_WOFF, S_WOFF)]

RB4 = [96, 112, 0, 16]
S_PASS = S_RND
def wo2_loads(s, cond=""):
    out = []
    for j in range(8):
        out.append("%sO%d|buffer_load_dwordx2 %s, v%d, %s, s%d offen offset:%d" % (
            cond, s, vr(RB4[s & 3] + 2 * j, 2), V_W if j < 4 else V_XD, srd(S_WO), S_WOFF, (j & 3) * 1024))
    if (s & 15) == 15:
        return out + ["s_mov_b32 s%d, 128" % S_WOFF]
    return out + ["s_add_u32 s%d, s%d, 32768" % (S_WOFF, S_WOFF)]
def calc_wo2(dst, dst2, t0):
    return ["v_bfe_u32 v%d, v%d, 4, 4" % (dst, V_L16),
            "v_lshlrev_b32 v%d, 3, v%d" % (dst, dst),
            "v_lshrrev_b32 v%d, 8, v%d" % (t0, V_L16),
            "v_lshl_add_u32 v%d, v%d, 13, v%d" % (dst, t0, dst),
            "v_add_u32 v%d, 0x1000, v%d" % (dst2, dst)]

def oproj2(A):
    def xr(buf, ks):
        out = ["ds_read_b128 %s, v%d offset:%d" % (vr(buf + 4 * t), V_XO, t * 4096 + (ks & 3) * 1024) for t in range(9)]
        if ks == 15:
            out.append("v_mov_b32 v%d, v%d" % (V_XO, V_L16))
        elif (ks & 3) == 3:
            out.append("v_add_u32 v%d, 36864, v%d" % (V_XO, V_XO))
        return out
    def fin(t):
        out = []
        for sg in range(2):
            b = [32, 44, 80, 240][(2 * t + sg) & 3]
            regs = [(e, 2 * sg + r1) for r1 in range(2) for e in range(4)]
            if t < 8:
                for i, (e, r) in enumerate(regs):
                    out.append("v_accvgpr_read_b32 v%d, %s" % (b + i, acc3_reg(t, e, r)))
                src = [b + i for i in range(8)]
            else:
                src = [int(acc3_reg(t, e, r)[1:]) for (e, r) in regs]
            for p in range(4):
                out.append("v_cvt_pk_bf16_f32 v%d, v%d, v%d" % (b + 8 + p, src[2 * p], src[2 * p + 1]))
            out.append("s_add_u32 s56, s57, %d" % ((sg * 9 + t) * 1024))
            out.append("buffer_store_dwordx4 %s, v%d, %s, s56 offen%s" % (vr(b + 8), V_L16, srd(S_P), OPT['stf']))
        return out
    A("s_mov_b32 s%d, 0" % S_PASS)
    A("s_mov_b32 s57, 0")
    A.many(xr(XB2[0], 0))
    hist1 = list(A.vms[0])
    def body(A):
        for s in range(16):
            par = s & 1
            mf = []
            if s < 15:
                for e in range(4):
                    for t in range(9):
                        c = "0" if s == 0 else acc3(t, e)
                        mf.append("%s %s, %s, %s, %s" % (MFMA, acc3(t, e), vr(VF + 4 * e), vr(XB2[par] + 4 * t), c))
            else:
                for t in range(9):
                    for e in range(4):
                        mf.append("%s %s, %s, %s, %s" % (MFMA, acc3(t, e), vr(VF + 4 * e), vr(XB2[par] + 4 * t), acc3(t, e)))
            sl = [[] for _ in range(37)]
            if s == 0:
                sl[0] += ["WAITVM O0"] + perms(RB4[0], VF, 0, 2)
            sl[0].append("s_waitcnt lgkmcnt(0)")
            spread(sl, perms(RB4[s & 3], VF, 1, 2), *((1, 6) if s < 15 else (0, 0)))
            spread(sl, xr(XB2[par ^ 1], (s + 1) & 15), 1, 10)
            if s + 4 < 16:
                spread(sl, wo2_loads(s + 4), 7, 15)
            else:
                spread(sl, wo2_loads(s + 4 - 16, "N"), 7, 15)
            if s < 15:
                sl[18].append("WAITVM O%d" % (s + 1))
                spread(sl, perms(RB4[(s + 1) & 3], VF, 0, 2), 19, 26)
            else:
                for t in range(7):
                    spread(sl, fin(t), 4 * (t + 2) + 1, 4 * (t + 3))
                sl[36] += fin(7) + fin(8)
            weave(A, mf, sl)
    B = Asm(); B.vms = [list(hist1)]
    body(B)
    hist2 = [t[1:] if t.startswith("NO") else ("-" if t.startswith("O") else t) for t in B.vms[0]]
    class Dual(Asm):
        pass
    A.vms = [hist1, hist2]
    A.label("K1_opass")
    body(A)
    A("s_add_u32 s%d, s%d, 1" % (S_PASS, S_PASS))
    A("s_mov_b32 s57, 18432")
    A("s_cmp_lg_u32 s%d, 2" % S_PASS)
    A("s_cbranch_scc1 K1_opass")

def ofinish(t):
    return conv_tile(t, [96, 108, 0, 12, 128, 140], None,
                     lambda t, s, r: ["s_mov_b32 s56, %d" % ((s * 9 + t) * 1024),
                                      "buffer_store_dwordx4 %s, v%d, %s, s56 offen%s" % (vr(r), V_L16, srd(S_P), OPT['stf'])])

def pre_attention(A):
    for u in range(32):
        A("v_mov_b32 v%d, 0" % (ACCV + u))
    A("v_lshlrev_b32 v%d, 3, v%d" % (V_W, V_L16))
    A("s_waitcnt lgkmcnt(0)")
    for u in range(4):
        A("v_mov_b32 v%d, 0" % (LS + u))

def o2_off(hs, s, t):
    return hs * 36864 + ((s * 4 + t - 5) * 1024 if t >= 5 else 16384 + (s * 5 + t) * 1024)
def ex_off(h, k):
    head = 16 if h == 0 else 20
    base = 0 if h == 0 else 16384
    return base + k * 1024 if k < head else 73728 + base + (k - head) * 1024

def gen_k1(A):
    global RB2
    if OPT['epi']:
        RB2 = [96, 0, 32]
    rare_sites = []
    A.raw(".globl %s" % K1)
    A.raw(".p2align 8")
    A.raw(".type %s,@function" % K1)
    A.label(K1)
    A("s_cmp_ge_u32 s2, 256")
    A("s_cbranch_scc1 K1_done")
    A("s_load_dwordx4 s[64:67], s[0:1], 0")
    A("s_load_dwordx4 s[68:71], s[0:1], 16")
    A("s_load_dwordx2 s[72:73], s[0:1], 32")
    A("s_load_dwordx2 s[74:75], s[0:1], 40")
    A("s_load_dwordx4 s[76:79], s[0:1], 48")
    A("s_load_dwordx4 s[80:83], s[0:1], 64")
    A("s_load_dwordx2 s[84:85], s[0:1], 96")
    if OPT['prof']:
        A("s_memtime s[98:99]")
    A("v_lshrrev_b32 v3, 6, v0")
    A("v_and_b32 v%d, 63, v0" % V_T0)
    A("s_nop 0")
    A("v_readfirstlane_b32 s%d, v3" % S_W)
    A("s_and_b32 s%d, s2, 1" % S_BLK)
    if OPT['map2']:
        A("s_lshr_b32 s56, s2, 3")
        A("s_and_b32 s%d, s56, 7" % S_HG)
        A("s_lshr_b32 s56, s56, 3")
        A("s_lshr_b32 s58, s2, 1")
        A("s_and_b32 s58, s58, 3")
        A("s_lshl_b32 s58, s58, 2")
        A("s_add_u32 s%d, s58, s56" % S_B)
    else:
        A("s_lshr_b32 s56, s2, 3")
        A("s_and_b32 s57, s56, 3")
        A("s_lshr_b32 s58, s2, 1")
        A("s_and_b32 s58, s58, 1")
        A("s_lshl_b32 s58, s58, 2")
        A("s_add_u32 s%d, s57, s58" % S_HG)
        A("s_lshr_b32 s58, s2, 2")
        A("s_and_b32 s58, s58, 1")
        A("s_lshl_b32 s58, s58, 3")
        A("s_lshr_b32 s56, s56, 2")
        A("s_add_u32 s%d, s58, s56" % S_B)
    A("s_and_b32 s%d, s%d, 1" % (S_TYPE, S_HG))
    if OPT.get('only') is not None:
        A("s_and_b32 s56, s%d, %d" % (S_HG, OPT['only']))
        A("s_cmp_lg_u32 s56, 0")
        A("s_cbranch_scc1 K1_done")
    if OPT.get('force') is not None:
        A("s_mov_b32 s%d, %d" % (S_TYPE, OPT['force']))
    A("s_mov_b32 s%d, 0" % S_RND)
    A("s_lshr_b32 s56, s%d, 1" % S_W)
    A("s_and_b32 s57, s%d, 1" % S_W)
    A("s_cmp_eq_u32 s%d, 0" % S_TYPE)
    A("s_cselect_b32 s59, s%d, s56" % S_W)
    A("s_cselect_b32 s%d, 0, s57" % S_HALF)
    A("s_lshl_b32 s58, s%d, 2" % S_HG)
    A("s_add_u32 s%d, s58, s59" % S_H)
    A("v_and_b32 v1, 15, v%d" % V_T0)
    A("v_lshrrev_b32 v2, 4, v%d" % V_T0)
    A("v_lshlrev_b32 v%d, 4, v%d" % (V_L16, V_T0))
    if OPT['cpf']:
        A("s_getpc_b64 s[60:61]")
        A("s_lshl_b32 s58, s%d, 13" % S_W)
        A("v_lshlrev_b32 v%d, 7, v%d" % (SEL, V_T0))
        A("v_add_u32 v%d, s58, v%d" % (SEL, SEL))
        for k in range(OPT['cpf']):
            A("global_load_dword v%d, v%d, s[60:61]" % (SEL + 1, SEL))
            A("v_add_u32 v%d, 0x8000, v%d" % (SEL, SEL))
    A("v_lshlrev_b32 v3, 8, v1")
    A("v_lshl_add_u32 v%d, v2, 5, v3" % V_OFFK0)
    A("v_add_u32 v%d, 0x1000, v%d" % (V_OFFK1, V_OFFK0))
    A("v_and_b32 v3, 3, v1")
    A("v_lshrrev_b32 v4, 2, v1")
    A("v_lshl_add_u32 v4, v3, 2, v4")
    A("v_lshlrev_b32 v4, 4, v4")
    A("v_lshl_add_u32 v%d, v2, 10, v4" % V_OFFV0)
    A("v_add_u32 v%d, 0x1000, v%d" % (V_OFFV1, V_OFFV0))
    A("v_bfe_u32 v3, v1, 1, 1")
    A("v_lshlrev_b32 v3, 3, v3")
    A("v_lshrrev_b32 v7, 2, v1")
    A("v_lshl_add_u32 v3, v7, 1, v3")
    A("v_and_b32 v7, 1, v1")
    A("v_add_u32 v3, v3, v7")
    A("v_lshlrev_b32 v3, 4, v3")
    A("v_lshl_add_u32 v%d, v2, 16, v3" % V_W)
    A.many(calc_xd(V_XD, 7))
    A("v_lshrrev_b32 v3, 3, v1")
    A("v_lshlrev_b32 v3, 10, v3")
    A("v_and_b32 v7, 7, v1")
    A("v_lshl_add_u32 v3, v7, 6, v3")
    A("v_lshrrev_b32 v7, 1, v1")
    A("v_xor_b32 v7, v7, v2")
    A("v_and_b32 v7, 2, v7")
    A("v_lshl_add_u32 v3, v7, 4, v3")
    A("v_and_b32 v7, 1, v2")
    A("v_lshl_add_u32 v%d, v7, 4, v3" % V_X)
    if OPT.get('xlin'):
        A("v_mov_b32 v%d, v%d" % (V_X, V_L16))
    if OPT.get('wlin'):
        A("v_lshlrev_b32 v%d, 4, v1" % V_W)
        A("v_lshl_add_u32 v%d, v2, 8, v%d" % (V_W, V_W))
    A("s_mul_i32 s58, s59, 36864")
    A("v_add_u32 v%d, s58, v%d" % (V_Q, V_L16))
    A("v_add_u32 v%d, %d, v%d" % (V_SELA, SEL_OFF, V_L16))
    A("s_mul_i32 s%d, s56, 18432" % S_XL)
    A("s_mul_i32 s58, s57, 9216")
    A("s_add_u32 s%d, s%d, s58" % (S_XL, S_XL))
    A("s_lshl_b32 s%d, s56, 7" % S_XG)
    A("s_mul_i32 s58, s57, 73728")
    A("s_add_u32 s%d, s%d, s58" % (S_XG, S_XG))
    for j in range(8):
        A("s_mov_b32 s%d, %d" % (S_J + j, j * 8192))
    A("s_mov_b32 s%d, 0x05040100" % S_PLO)
    A("s_mov_b32 s%d, 0x07060302" % S_PHI)
    A("s_mov_b32 s%d, 0x%08x" % (S_C, f32bits(SCALE)))
    A("s_mov_b32 s%d, 0x%08x" % (S_C + 1, f32bits(SCALE)))
    A("s_mov_b32 s%d, 0x%08x" % (S_THR, f32bits(THR)))
    A("s_lshl_b32 s%d, s%d, 16" % (S_KOFF, S_HALF))
    A("s_mov_b32 s%d, s%d" % (S_VOFF, S_KOFF))
    A("s_mov_b32 s%d, 0" % S_WOFF)
    A("v_mov_b32 v5, 0x3f803f80")
    A("s_lshl_b32 s56, s%d, 10" % S_W)
    A("v_add_u32 v6, s56, v%d" % V_SELA)
    for k in range(3):
        A("s_add_u32 s57, s%d, %d" % (S_W, 4 * k))
        A("v_cmp_eq_u32 vcc, s57, v1")
        A("s_nop 1")
        for r in range(4):
            A("v_cndmask_b32 v%d, 0, v5, vcc" % (8 + 4 * k + r))
        if k == 2:
            A("s_cmp_lg_u32 s%d, 0" % S_W)
            A("s_cbranch_scc1 K1_selskip")
        A("ds_write_b128 v6, %s offset:%d" % (vr(8 + 4 * k), 4096 * k))
    A.label("K1_selskip")
    A("s_waitcnt lgkmcnt(0)")
    A("s_cmp_eq_u32 s%d, 0" % S_BLK)
    for i in range(10):
        A("s_cselect_b32 s%d, s%d, s%d" % (64 + i, 64 + i, 74 + i))
    A("s_mul_i32 s56, s%d, 147456" % S_B)
    make_srd(A, S_X, 64, 65, "s56", "147456")
    A("s_lshl_b32 s56, s%d, 8" % S_H)
    A("s_lshl_b32 s57, s%d, 7" % S_HALF)
    A("s_add_u32 s56, s56, s57")
    A("s_sub_u32 s57, 4194304, s56")
    make_srd(A, S_WQ, 70, 71, "s56", "s57")
    A("s_lshl_b32 s56, s%d, 5" % S_B)
    A("s_add_u32 s56, s56, s%d" % S_H)
    A("s_lshl_b32 s57, s56, 17")
    make_srd(A, S_K, 66, 67, "s57", "131072")
    make_srd(A, S_V, 68, 69, "s57", "131072")
    A("s_lshl_b32 s57, s%d, 19" % S_HG)
    A("s_lshl_b32 s58, s%d, 8" % S_W)
    A("s_add_u32 s57, s57, s58")
    A("s_sub_u32 s58, 524288, s58")
    make_srd(A, S_WO, 72, 73, "s57", "s58")
    if OPT['v1only']:
        A("s_mov_b32 s56, s%d" % S_HG)
    else:
        A("s_lshr_b32 s56, s%d, 1" % S_HG)
        A("s_lshl_b32 s57, s56, 1")
        A("s_add_u32 s57, s57, 4")
        A("s_cmp_eq_u32 s%d, 0" % S_TYPE)
        A("s_cselect_b32 s56, s56, s57")
    A("s_lshl_b32 s57, s%d, 4" % S_BLK)
    A("s_add_u32 s57, s57, s%d" % S_B)
    A("s_mul_i32 s57, s57, %d" % NSLOT)
    A("s_add_u32 s57, s57, s56")
    A("s_lshl_b32 s57, s57, 2")
    A("s_add_u32 s57, s57, s%d" % S_W)
    A("s_mul_i32 s57, s57, 36864")
    make_srd(A, S_P, 84, 85, "s57", "36864")
    if OPT['prof']:
        A("s_mov_b32 s%d, s98" % STAMP_REGS[0])
    if not OPT['v1only']:
        A("s_cmp_lg_u32 s%d, 0" % S_TYPE)
        A("s_cbranch_scc1 K1_v2_entry")
    base_vm = list(A.vms[0])
    if OPT['rot']:
        A("s_add_u32 s56, s%d, s%d" % (S_HG, S_B))
        A("s_and_b32 s56, s56, 3")
        for j in range(4):
            A("s_add_u32 s57, s56, %d" % j)
            A("s_and_b32 s57, s57, 3")
            A("s_lshl_b32 s57, s57, 8")
            A("s_add_u32 s%d, s%d, s57" % (S_XR + j, S_XG))
        A("s_lshl_b32 s56, s56, 20")
        A("v_add_u32 v%d, s56, v%d" % (V_W, V_W))

    def wq_loads(s):
        return ["W%d|buffer_load_dwordx4 %s, v%d, %s, s%d offen" % (s, vr(RB1[s % 3] + 4 * j), V_W, srd(S_WQ), S_J + j) for j in range(8)] + \
               ["v_add_u32 v%d, 0x40000, v%d" % (V_W, V_W)] + (["v_and_b32 v%d, 0x3fffff, v%d" % (V_W, V_W)] if OPT['rot'] else [])
    A.many(x_dma(0, V_XD) + wq_loads(0) + wq_loads(1) + wq_loads(2) + x_dma(1, V_XD) + x_dma(2, V_XD) + x_dma(3, V_XD))
    A("WAITVM W0")
    for i in range(3):
        A.many(perms(RB1[0], VF, i))
    A("s_barrier")
    stamp(A, 1)
    A.many(xq_reads(lambda t: vr(XB1[0] + 4 * t), 0))
    def qhook(s, sl, when):
        if when == 'pre':
            if OPT['onebar']:
                if s == 3:
                    sl[0].append("WAITVM XS3")
                    sl[0].append("s_barrier")
            elif s in (3, 7, 11):
                sl[0].append("WAITVM XS%d" % ((s + 1) // 4))
                sl[0].append("s_barrier")
            if s == 15:
                sl[0].append("s_barrier")
            return
        if s == 15:
            spread(sl, v_loads(), 1, 8)
            sl[72] += k_loads(KB[1])
            for i in range(OPT['npf2']):
                sl[72] += pf_piece(max(OPT['npf'], 6) + i)
        if s == 6 and OPT['tlb']:
            spread(sl, tlb_touch(), 45, 50)
        if s == 13:
            spread(sl, k_loads(KB[0], "K0"), 9, 17)
        for i in range(pf_steps.count(s)):
            spread(sl, pf_piece(pfi[0]), 45 + 5 * i, 49 + 5 * i); pfi[0] += 1
    npf = OPT['npf']
    pf_steps = [OPT['pfs0'] + (i * (OPT['pfs1'] - OPT['pfs0'] + 1)) // npf for i in range(npf)] if npf else []
    pfi = [0]
    def tlb_touch():
        return ["v_lshlrev_b32 v%d, 5, v%d" % (SEL, V_L16),
                "buffer_load_dword v%d, v%d, %s, 0 offen" % (SEL + 1, SEL, srd(S_P)),
                "v_lshlrev_b32 v%d, 9, v%d" % (SEL + 2, V_L16),
                "buffer_load_dword v%d, v%d, %s, 0 offen" % (SEL + 3, SEL + 2, srd(S_WO))]
    def qfinish(t):
        return conv_tile(t, [168, 180, 192, 0, 12], ('s', S_C),
                         lambda t, s, r: ["ds_write_b128 v%d, %s offset:%d" % (V_Q, vr(r), (t * 4 + s) * 1024)])
    proj_loop(A, 16, RB1, XB1, lambda buf, ks: xq_reads(lambda t: vr(buf + 4 * t), ks), wq_loads, "W", qhook, qfinish)
    pre_attention(A)
    A("s_mov_b32 s%d, 7" % S_CNT)
    if OPT.get('half'):
        A("s_cmp_ge_u32 s%d, 2" % S_W)
        A("s_cselect_b32 s%d, 1, 7" % S_CNT)

    A.label("K1_att")
    A.vms = [["K0"] * 8 + ["V"] * 8 + ["K"] * 8 + ["PF"] * (4 * OPT['npf2'] if OPT['v1only'] else 0)]
    def q_read(t, s):
        return "ds_read_b128 %s, v%d offset:%d" % (vr(QB + 4 * s), V_Q, (t * 4 + s) * 1024)
    def a_mfmas(kb, sb, t, first):
        out = []
        for s in range(4):
            for kt in range(2):
                c = ("0" if first else vr(NM + 4 * t)) if s == 0 else vr(sb + 4 * kt)
                out.append("%s %s, %s, %s, %s" % (MFMA, vr(sb + 4 * kt), vr(kb + 4 * (kt * 4 + s)), vr(QB + 4 * s), c))
        return out
    def c_mfmas(t, pb, first):
        out = ["%s %s, %s, %s, %s" % (MFMA, vr(LS), vr(SEL), vr(pb), vr(LS))]
        for e in range(8):
            c = "0" if first else acc(t, e)
            out.append("%s %s, %s, %s, %s" % (MFMA, acc(t, e), vr(VF + 4 * e), vr(pb), c))
        return out
    stamp(A, 2, True)
    A.many([q_read(0, s) for s in range(4)])
    A("WAITVM K0 0")
    A.many(a_mfmas(KB[0], SB[0], 0, True))
    A.many([q_read(1, s) for s in range(4)])
    A("WAITVM V")
    for i in range(4):
        A.many(perms(VR, VF, i))
    if OPT['v1early']:
        A.many(v_loads())

    def epi_bperm(t):
        return "ds_bpermute_b32 v%d, v%d, v%d offset:%d" % (NM + 4 * t + 2, V_X, LS + (t & 3), 64 * (t >> 2))
    def epi_rcp(t):
        return "v_rcp_f32 v%d, v%d" % (NM + 4 * t, NM + 4 * t + 2)
    def epi_conv(t):
        return conv_tile(t, [32, 44], ('p', NM + 4 * t),
                         lambda t, s, r: ["ds_write_b128 v%d, %s offset:%d" % (V_Q, vr(r), (t * 4 + s) * 1024)])

    def iteration(A, bpar, t, kind, site):
        par = (bpar + t) & 1
        has_a = not (kind == 'last' and t == 8) and kind != 'drain'
        has_c = not (kind == 'first' and t == 0)
        has_b = kind != 'drain'
        amf = a_mfmas(KB[bpar] if t < 8 else KB[bpar ^ 1], SB[par ^ 1], (t + 1) % 9, kind == 'first' and t < 8) if has_a else []
        cmf = c_mfmas((t - 1) % 9, PB[par ^ 1], kind == 'first') if has_c else []
        mf = amf + cmf
        nm = len(mf); na = len(amf)
        sl = [[] for _ in range(nm + 1)]
        sl[0].append("WAITVM K 0" if (t == 8 and has_a) else "s_waitcnt lgkmcnt(0)")
        S = SB[par]; P = PB[par]; nmr = NM + 4 * t
        def G(x):
            return min(nm, (x * nm) // 17)
        if has_b:
            ex = ["v_exp_f32 v%d, v%d" % (S + i, S + i) for i in range(8)]
            cv = ["v_cvt_pk_bf16_f32 v%d, v%d, v%d" % (P + p, S + 2 * p, S + 2 * p + 1) for p in range(4)]
            if kind == 'first':
                pre = max8(V_T0, S) + xlane_reduce(V_T0, V_T1, "v_max_f32")
                pre += ["v_sub_f32 v%d, 0, v%d" % (nmr + r, V_T0) for r in range(4)]
                sb = ["v_sub_f32 v%d, v%d, v%d" % (S + i, S + i, V_T0) for i in range(8)]
                spread(sl, pre, G(0), G(5))
                spread(sl, sb, G(6), G(8))
                spread(sl, ex, G(9), G(15))
                spread(sl, ["s_nop 0"] + cv, G(16), G(17))
            else:
                spread(sl, max8(V_T0, S) + ["v_cmp_lt_f32 vcc, s%d, v%d" % (S_THR, V_T0)], G(0), G(2))
                sl[G(4)].append("s_cbranch_vccnz K1_rare_%s" % site)
                sl[G(4)].append("K1_back_%s:" % site)
                rare_sites.append((site, t, S))
                spread(sl, ex, G(4), G(12))
                spread(sl, cv, G(13), G(16))
        if has_a and (kind in ('first', 'mid') or (kind == 'last' and t <= 6)):
            for s in range(4):
                sl[2 * s + 2].append(q_read((t + 2) % 9, s))
        if has_b:
            sl[min(nm, na + 2)].append("ds_read_b128 %s, v%d offset:%d" % (vr(SEL), V_SELA, t * 1024))
        if t == 8 and kind in ('first', 'mid') and not OPT['kt7']:
            spread(sl, k_loads(KB[bpar]), G(2), G(11))
        if t == 8 and kind in ('first', 'mid') and OPT['kt7']:
            sl[1].append("RETAG KN K")
        if kind != 'first' and kind != 'drain':
            if t == 0:
                sl[na + 2].append("WAITVM V")
                spread(sl, perms(VR, VF, 0), na + 3, na + 5)
                spread(sl, perms(VR, VF, 1), na + 5, na + 7)
                spread(sl, perms(VR, VF, 2), na + 7, na + 9)
            if t == 1:
                spread(sl, perms(VR, VF, 3), 1, 4)
        if t == 2 and kind in ('first', 'mid') and not (OPT['v1early'] and kind == 'first') and not OPT['vt1']:
            spread(sl, v_loads(), G(2), G(11))
        if t == 1 and kind == 'mid' and OPT['vt1']:
            spread(sl, v_loads(), G(6), G(15))
        if t == 7 and kind in ('first', 'mid') and OPT['kt7']:
            spread(sl, k_loads(KB[bpar], "KN"), na + 1, nm)
        if OPT['apf'] and t == 4 and kind in ('first', 'mid'):
            pf = []
            for d in range(OPT['apf']):
                pf += ["s_add_u32 s56, s%d, %d" % (S_KOFF, 8192 * (OPT['apfd'] + d)), "s_and_b32 s56, s56, 0x1ffff",
                       "PF|buffer_load_dword v%d, v%d, %s, s56 offen" % (V_XD, V_W, srd(S_K)),
                       "s_add_u32 s56, s%d, %d" % (S_VOFF, 8192 * (OPT['apfd'] + d)), "s_and_b32 s56, s56, 0x1ffff",
                       "PF|buffer_load_dword v%d, v%d, %s, s56 offen" % (V_XD, V_W, srd(S_V))]
            spread(sl, pf, G(2), G(11))
        if kind == 'last' and t == 1:
            spread(sl, (calc_wo2 if OPT['o2'] else calc_wo)(V_W, V_XD, V_T1), G(6), G(12))
        if kind == 'last' and t == 2:
            spread(sl, (wo2_loads(0) + wo2_loads(1)) if OPT['o2'] else wo_loads(0), G(2), G(11))
        if not OPT['epi']:
            if kind == 'last' and t == 4:
                spread(sl, wo_loads(1), G(2), G(11))
            if kind == 'last' and t == 8:
                spread(sl, wo_loads(2), G(2), G(8))
        elif kind in ('last', 'drain'):
            tt = t if kind == 'last' else 9
            if tt == 0:
                sl[1] += ["v_and_b32 v%d, 0xf0, v%d" % (V_X, V_L16), "v_lshrrev_b32 v%d, 2, v%d" % (V_X, V_X)]
            if tt == 8:
                spread(sl, (wo2_loads(2) + wo2_loads(3)) if OPT['o2'] else wo_loads(1), G(2), G(8))
            if tt >= 1:
                sl[nm].append(epi_bperm(tt - 1))
            if tt >= 2:
                sl[0].append(epi_rcp(tt - 2))
                spread(sl, epi_conv(tt - 2), 2, nm)
        if kind == 'first' and t == 0:
            sl[nm].append("s_nop 3")
        if OPT.get('strip') and kind == 'mid':
            pats = {"exp": ("v_exp",), "ds": ("ds_read",), "br": ("s_cbranch", "v_cmp"), "max": ("v_max",), "cvt": ("v_cvt",),
                    "perm": ("v_perm",), "ld": ("K|", "KN|", "V|", "WAITVM", "RETAG"), "valu": ("v_exp", "v_max", "v_cvt", "v_cmp", "s_cbranch", "v_perm")}
            drop = sum((pats[p] for p in OPT['strip'].split("+")), ())
            sl = [[x for x in g if not x.startswith(drop)] for g in sl]
        if OPT.get('nocomp') and kind == 'mid':
            keep = OPT['nocomp']
            mf = [m if (keep == 2) else "s_nop 0" for m in mf]
            sl = [[x for x in g if x.startswith(("WAITVM", "K|", "V|", "s_add", "s_and", "K1_back", "s_cbranch"))] for g in sl]
        weave(A, mf, sl)

    for t in range(9):
        iteration(A, 0, t, 'first', None)
    A.label("K1_aloop")
    w0 = len(A.waits)
    for t in range(9):
        iteration(A, 1, t, 'mid', "o%d" % t)
    for t in range(9):
        iteration(A, 0, t, 'mid', "e%d" % t)
    w1 = len(A.waits)
    B = Asm(); B.vms = [list(A.vms[0])]; saved = list(rare_sites)
    for t in range(9):
        iteration(B, 1, t, 'mid', "o%d" % t)
    for t in range(9):
        iteration(B, 0, t, 'mid', "e%d" % t)
    assert B.waits == A.waits[w0:w1], (B.waits, A.waits[w0:w1])
    del rare_sites[len(saved):]
    A("s_sub_u32 s%d, s%d, 1" % (S_CNT, S_CNT))
    A("s_cmp_lg_u32 s%d, 0" % S_CNT)
    A("s_cbranch_scc1 K1_aloop")
    A.vms[0].append("V")
    for t in range(9):
        iteration(A, 1, t, 'last', "l%d" % t)
    iteration(A, 0, 0, 'drain', None)
    stamp(A, 3, True)
    if OPT['epi']:
        LB = 144
        att_vm = list(A.vms[0])
        A("s_waitcnt lgkmcnt(0)")
        A(epi_rcp(8))
        A("s_nop 0")
        A.many(epi_conv(8))
        if not OPT['o2']:
            A.many(wo_loads(2))
    else:
        LB = 144
        A("v_and_b32 v%d, 0xf0, v%d" % (V_T0, V_L16))
        A("v_lshrrev_b32 v%d, 2, v%d" % (V_T0, V_T0))
        A("s_nop 4")
        for t in range(9):
            A("ds_bpermute_b32 v%d, v%d, v%d offset:%d" % (LB + t, V_T0, LS + (t & 3), 64 * (t >> 2)))
        att_vm = list(A.vms[0])
        if not OPT['v1only']:
            A("s_cmp_lg_u32 s%d, 0" % S_TYPE)
            A("s_cbranch_scc1 K1_v2_combine")

        RL = 200
        A("s_waitcnt lgkmcnt(0)")
        for t in range(9):
            A("v_rcp_f32 v%d, v%d" % (RL + t, LB + t))
        for t in range(9):
            A.many(conv_tile(t, [128, 156, 168, 180], ('v', RL + t),
                             lambda t, s, r: ["ds_write_b128 v%d, %s offset:%d" % (V_Q, vr(r), (s * 9 + t) * 1024)]))
    A("v_mov_b32 v%d, v%d" % (V_XO, V_L16))
    if not OPT['o2']:
        A("WAITVM O0")
        for i in range(3):
            A.many(perms(RB2[0], VF, i))
    A("s_waitcnt lgkmcnt(0)")
    A("s_barrier")
    stamp(A, 4)
    def xo_reads1(buf, ks):
        if OPT['epi']:
            return ["ds_read_b128 %s, v%d offset:%d" % (vr(buf + 4 * t), V_XO, t * 4096 + (ks & 3) * 1024) for t in range(9)] + \
                   (["v_add_u32 v%d, 36864, v%d" % (V_XO, V_XO)] if (ks & 3) == 3 else [])
        return ["ds_read_b128 %s, v%d offset:%d" % (vr(buf + 4 * t), V_XO, t * 1024) for t in range(9)] + \
               ["v_add_u32 v%d, 9216, v%d" % (V_XO, V_XO)]
    if OPT['o2']:
        oproj2(A)
    else:
        A.many(xo_reads1(XB2[0], 0))
        proj_loop(A, 16, RB2, XB2, xo_reads1, wo_loads, "O", lambda s, sl, when: None, ofinish)
    if OPT['prof']:
        A("s_waitcnt vmcnt(0)")
    stamp(A, 5)
    A.label("K1_end")
    stamp_flush(A, 16)
    A.label("K1_done")
    A("s_endpgm")

    for site, t, S in rare_sites:
        nmr = NM + 4 * t
        A.label("K1_rare_%s" % site)
        A.many(xlane_reduce(V_T0, V_T1, "v_max_f32"))
        A("v_max_f32 v%d, 0, v%d" % (V_T0, V_T0))
        A("v_sub_f32 v%d, 0, v%d" % (V_T1, V_T0))
        A("v_exp_f32 v%d, v%d" % (V_T1, V_T1))
        for r in range(4):
            A("v_sub_f32 v%d, v%d, v%d" % (nmr + r, nmr + r, V_T0))
        for i in range(8):
            A("v_sub_f32 v%d, v%d, v%d" % (S + i, S + i, V_T0))
        A("s_mov_b32 s56, 0x%x" % ((0xffff << (16 * (t >> 2))) & 0xffffffff))
        A("s_mov_b32 s57, 0x%x" % ((0xffff << (16 * (t >> 2))) >> 32))
        A("v_cndmask_b32 v%d, 1.0, v%d, s[56:57]" % (V_T0, V_T1))
        A("v_mul_f32 v%d, v%d, v%d" % (LS + (t & 3), LS + (t & 3), V_T0))
        for e in range(8):
            for r in range(4):
                reg = acc_reg(t, e, r)
                if reg[0] == 'a':
                    A("v_accvgpr_read_b32 v%d, %s" % (V_T0, reg))
                    A("v_mul_f32 v%d, v%d, v%d" % (V_T0, V_T0, V_T1))
                    A("v_accvgpr_write_b32 %s, v%d" % (reg, V_T0))
                else:
                    A("v_mul_f32 %s, %s, v%d" % (reg, reg, V_T1))
        A("s_nop 1")
        A("s_branch K1_back_%s" % site)

def gen_k2(A):
    A.raw(".globl %s" % K2)
    A.raw(".p2align 8")
    A.raw(".type %s,@function" % K2)
    A.label(K2)
    A("s_cmp_ge_u32 s2, %d" % (0 if OPT.get('k2empty') else 1152))
    A("s_cbranch_scc1 K2_done")
    A("s_load_dwordx2 s[64:65], s[0:1], 80")
    A("s_load_dwordx2 s[66:67], s[0:1], 96")
    if OPT['map2']:
        A("s_lshr_b32 s20, s2, 3")
        A("s_mul_hi_u32 s4, s20, 0x71c71c8")
        A("s_mul_i32 s5, s4, 36")
        A("s_sub_u32 s5, s20, s5")
        A("s_and_b32 s21, s2, 1")
        A("s_lshl_b32 s21, s21, 4")
        A("s_add_u32 s4, s4, s21")
        A("s_lshr_b32 s21, s2, 1")
        A("s_and_b32 s21, s21, 3")
        A("s_lshl_b32 s21, s21, 2")
        A("s_add_u32 s4, s4, s21")
    else:
        A("s_mul_hi_u32 s4, s2, 0x71c71c8")
        A("s_mul_i32 s5, s4, 36")
        A("s_sub_u32 s5, s2, s5")
    A("v_lshrrev_b32 v1, 6, v0")
    A("v_and_b32 v2, 63, v0")
    A("s_nop 0")
    A("v_readfirstlane_b32 s6, v1")
    A("s_lshl_b32 s5, s5, 2")
    A("s_add_u32 s5, s5, s6")
    A("s_mul_hi_u32 s7, s5, 0x1c71c71d")
    A("s_mul_i32 s12, s7, 9")
    A("s_sub_u32 s12, s5, s12")
    A("v_lshlrev_b32 v3, 4, v2")
    A("s_waitcnt lgkmcnt(0)")
    A("s_mul_i32 s13, s4, %d" % (NSLOT * PART_BYTES))
    A("s_lshl_b32 s14, s5, 10")
    A("s_add_u32 s13, s13, s14")
    A("s_add_u32 s8, s66, s13")
    A("s_addc_u32 s9, s67, 0")
    A("s_mov_b32 s10, %d" % ((NSLOT - 1) * PART_BYTES + 1024))
    A("s_mov_b32 s11, 0x00020000")
    for h in range(NSLOT):
        A("s_mov_b32 s15, %d" % (h * PART_BYTES))
        A("buffer_load_dwordx4 %s, v3, s[8:11], s15 offen%s" % (vr(8 + 4 * h), OPT['rdf']))
    A("s_and_b32 s13, s4, 15")
    A("s_lshr_b32 s14, s4, 4")
    A("s_mul_i32 s13, s13, 144")
    A("s_lshl_b32 s12, s12, 4")
    A("s_add_u32 s13, s13, s12")
    A("s_lshl_b32 s13, s13, 11")
    A("s_lshl_b32 s14, s14, 10")
    A("s_add_u32 s13, s13, s14")
    if OPT['o2']:
        A("s_lshr_b32 s14, s7, 1")
        A("s_lshl_b32 s14, s14, 7")
        A("s_add_u32 s13, s13, s14")
        A("s_and_b32 s14, s7, 1")
        A("s_lshl_b32 s14, s14, 4")
        A("s_add_u32 s13, s13, s14")
    else:
        A("s_lshl_b32 s14, s7, 6")
        A("s_add_u32 s13, s13, s14")
    A("v_and_b32 v4, 15, v2")
    A("v_lshrrev_b32 v5, 4, v2")
    A("v_lshlrev_b32 v4, 11, v4")
    A("v_lshl_add_u32 v4, v5, %d, v4" % (5 if OPT['o2'] else 4))
    A("s_mov_b32 s16, s64")
    A("s_mov_b32 s17, s65")
    A("s_mov_b32 s18, %d" % (16 * 144 * 1024 * 2))
    A("s_mov_b32 s19, 0x00020000")
    R = 8 + 4 * NSLOT
    for h in range(NSLOT):
        A("s_waitcnt vmcnt(%d)" % (NSLOT - 1 - h))
        for p in range(4):
            src = 8 + 4 * h + p
            if h == 0:
                A("v_lshlrev_b32 v%d, 16, v%d" % (R + 2 * p, src))
                A("v_and_b32 v%d, 0xffff0000, v%d" % (R + 1 + 2 * p, src))
            else:
                A("v_lshlrev_b32 v%d, 16, v%d" % (R + 8, src))
                A("v_and_b32 v%d, 0xffff0000, v%d" % (R + 9, src))
                A("v_add_f32 v%d, v%d, v%d" % (R + 2 * p, R + 2 * p, R + 8))
                A("v_add_f32 v%d, v%d, v%d" % (R + 1 + 2 * p, R + 1 + 2 * p, R + 9))
    for p in range(4):
        A("v_cvt_pk_bf16_f32 v%d, v%d, v%d" % (R + 12 + p, R + 2 * p, R + 1 + 2 * p))
    A("buffer_store_dwordx4 %s, v4, s[16:19], s13 offen" % vr(R + 12))
    A.label("K2_done")
    A("s_endpgm")
    return R + 16

def descriptor(A, name, vgpr, accum):
    A.raw(".amdhsa_kernel %s" % name)
    A.raw("  .amdhsa_next_free_vgpr %d" % vgpr)
    A.raw("  .amdhsa_next_free_sgpr 102")
    A.raw("  .amdhsa_accum_offset %d" % accum)
    A.raw("  .amdhsa_group_segment_fixed_size 0")
    A.raw("  .amdhsa_kernarg_size 104")
    A.raw("  .amdhsa_user_sgpr_count 2")
    A.raw("  .amdhsa_user_sgpr_kernarg_segment_ptr 1")
    A.raw("  .amdhsa_system_sgpr_workgroup_id_x 1")
    A.raw(".end_amdhsa_kernel")

def main(path):
    A = Asm()
    hdr = open("cdna_kernels/%s.s.ref" % NAME).read().splitlines()
    for ln in hdr:
        if ln.startswith("; @launch"):
            break
        if ln.startswith("; Override") or ln.startswith("; grid=ceil"):
            continue
        A.raw(ln)
    A.raw("; @launch kernel=%s grid=(256,1,1) block=(256,1,1) lds=%d" % (K1, LDS_BYTES))
    A.raw("; @launch kernel=%s grid=(1152,1,1) block=(256,1,1) lds=0" % K2)
    A.raw('.amdgcn_target "amdgcn-amd-amdhsa--gfx950"')
    A.raw(".text")
    gen_k1(A)
    nv = gen_k2(A)
    A.raw('.section .rodata,"a"')
    A.raw(".p2align 6")
    descriptor(A, K1, 512, 256)
    A.raw(".p2align 6")
    descriptor(A, K2, nv, (nv + 3) // 4 * 4)
    open(path, "w").write(A.text())

if __name__ == "__main__":
    path = "cdna_kernels/%s.s" % NAME
    for a in sys.argv[1:]:
        if a.startswith("--"):
            k = a[2:]
            if "=" in k:
                k, v = k.split("="); OPT[k] = int(v) if v.isdigit() else v
            else:
                OPT[k] = True
        else:
            path = a
    if OPT['v1only']:
        OPT['force'] = 0; NSLOT = 8; OPT['cpf'] = min(OPT['cpf'], 2)
    if OPT['rdf']: OPT['rdf'] = " " + OPT['rdf'].replace("+", " ")
    if OPT['stf']: OPT['stf'] = " " + OPT['stf'].replace("+", " ")
    if OPT['kvf']: OPT['kvf'] = " " + OPT['kvf'].replace("+", " ")
    main(path)
```
